```python
import torch

def _softmax(x, axis=-1):
    return torch.softmax(x, dim=axis)
def _gelu(x):
    return torch.nn.functional.gelu(x, approximate="tanh")
def _silu(x):
    return torch.nn.functional.silu(x)
def _sigmoid(x):
    return torch.sigmoid(x)
def _layernorm(x, axis=-1, eps=1e-5):
    m = x.mean(dim=axis, keepdim=True)
    v = x.var(dim=axis, keepdim=True, unbiased=False)
    return (x - m) / torch.sqrt(v + eps)
def _scatter_add(tgt, idx, src, axis=0):
    return tgt.clone().index_add_(axis, idx, src)
def _segment_sum(src, seg, n):
    out = torch.zeros((n,) + src.shape[1:], dtype=src.dtype)
    return out.index_add_(0, seg, src)
def _pad(x, pw):
    flat = tuple(v for pair in reversed(pw) for v in pair)
    return torch.nn.functional.pad(x, flat)

kernel_name = 'parallel_sum__spectral_fnet__moe_arch_mod__prompt'

def setup_inputs():

    _w = (lambda a: (lambda t: t.to(torch.bfloat16) if t.is_floating_point() else t)(torch.as_tensor(a)))
    def _A_setup():
        B, S, D = 1, 2048, 1024
        ns = torch.arange(S)[:, None] * torch.arange(S)[None, :]
        nd = torch.arange(D)[:, None] * torch.arange(D)[None, :]
        Ws_re = torch.cos(-2.0 * torch.pi * ns / S).to(float)
        Ws_im = torch.sin(-2.0 * torch.pi * ns / S).to(float)
        Wd_re = torch.cos(-2.0 * torch.pi * nd / D).to(float)
        Wd_im = torch.sin(-2.0 * torch.pi * nd / D).to(float)
        return {
            "x": _w((lambda *s: torch.randn(*s, dtype=torch.bfloat16) * 0.05)(B, S, D)),
            "dft_seq_re": _w(Ws_re),
            "dft_seq_im": _w(Ws_im),
            "dft_hid_re": _w(Wd_re),
            "dft_hid_im": _w(Wd_im),
        }
    _A_in = _A_setup()

    def _B_setup():
        B, S, D, F, C = 1, 2048, 1024, 3584, 2
        return {
            "x": _w((lambda *s: torch.randn(*s, dtype=torch.bfloat16) * 0.05)(B, S, D)),
            "w_r": _w((lambda *s: torch.randn(*s, dtype=torch.bfloat16) * 1.6)(D)),
            "w_gate": _w((lambda *s: torch.randn(*s, dtype=torch.bfloat16) * 0.4)(D, F)),
            "w_up": _w((lambda *s: torch.randn(*s, dtype=torch.bfloat16) * 0.4)(D, F)),
            "w_down": _w((lambda *s: torch.randn(*s, dtype=torch.bfloat16) * 0.4)(F, D)),
        }
    _B_in = _B_setup()

    return {
        "A_x": _A_in["x"],
        "A_dft_seq_re": _A_in["dft_seq_re"],
        "A_dft_seq_im": _A_in["dft_seq_im"],
        "A_dft_hid_re": _A_in["dft_hid_re"],
        "A_dft_hid_im": _A_in["dft_hid_im"],
        "B_x": _B_in["x"],
        "B_w_r": _B_in["w_r"],
        "B_w_gate": _B_in["w_gate"],
        "B_w_up": _B_in["w_up"],
        "B_w_down": _B_in["w_down"],
    }

def reference(A_x, A_dft_seq_re, A_dft_seq_im, A_dft_hid_re, A_dft_hid_im, B_x, B_w_r, B_w_gate, B_w_up, B_w_down):
    def _A_ref(x, dft_seq_re, dft_seq_im, dft_hid_re, dft_hid_im):
        a = torch.einsum("bsd,ed->bse", x, dft_hid_re)
        b = torch.einsum("bsd,ed->bse", x, dft_hid_im)
        y = torch.einsum("ts,bse->bte", dft_seq_re, a) - torch.einsum("ts,bse->bte", dft_seq_im, b)
        return y

    def _B_ref(x, w_r, w_gate, w_up, w_down):
        B, S, D = x.shape
        C = 2
        r = x @ w_r
        idx = torch.argsort(-r, axis=-1)[:, :C]
        idx_e = (lambda x, n, axis: torch.repeat_interleave(x, n, dim=axis))(idx.reshape(B, C, 1), D, axis=2)
        x_sel = (lambda x, i, axis: torch.take_along_dim(x, i, dim=axis))(x, idx_e, axis=1)
        g = _silu(x_sel @ w_gate)
        u = x_sel @ w_up
        y = (g * u) @ w_down
        r_sel = _sigmoid((lambda x, i, axis: torch.take_along_dim(x, i, dim=axis))(r, idx, axis=1))
        y = y * r_sel.reshape(B, C, 1)
        b_off = (torch.arange(B) * S).reshape(B, 1)
        flat_idx = (idx + b_off).reshape(B * C)
        zero = (x * 0.0).reshape(B * S, D)
        upd = _scatter_add(zero, flat_idx, y.reshape(B * C, D), axis=0)
        return x + upd.reshape(B, S, D)

    x = A_x
    xn = _layernorm(x, axis=-1)
    return x + _A_ref(xn, A_dft_seq_re, A_dft_seq_im, A_dft_hid_re, A_dft_hid_im) + _B_ref(xn, B_w_r, B_w_gate, B_w_up, B_w_down)
```

```python
HEADER_COMMENT = """; Kernarg layout for this problem (104 bytes, ptrs only, base s[0:1]):
"""

KA = dict(x=0, seq_re=8, seq_im=16, hid_re=24, hid_im=32, bx=40, w_r=48, w_gate=56, w_up=64,
          w_down=72, out=80, dbg=88, ws=96)
SIZES = dict(x=4194304, seq_re=8388608, seq_im=8388608, hid_re=2097152, hid_im=2097152,
             bx=4194304, w_r=2048, w_gate=7340032, w_up=7340032, w_down=7340032,
             out=4194304, dbg=256, ws=268435456)


def v(i, n=1):
    return f"v{i}" if n == 1 else f"v[{i}:{i + n - 1}]"


def a(i, n=1):
    return f"a{i}" if n == 1 else f"a[{i}:{i + n - 1}]"


def s(i, n=1):
    return f"s{i}" if n == 1 else f"s[{i}:{i + n - 1}]"


class Kernel:
    def __init__(self, name, grid, block, lds=0, vgprs=256, agprs=0, sgprs=102):
        self.name, self.grid, self.block, self.lds = name, grid, block, lds
        self.vgprs, self.agprs, self.sgprs = vgprs, agprs, sgprs
        self.lines = []
        self._lab = 0

    def __call__(self, text):
        for ln in text.strip("\n").split("\n"):
            ln = ln.strip()
            if not ln:
                continue
            if ln.endswith(":"):
                self.lines.append(ln)
            else:
                self.lines.append("    " + ln)

    def label(self, stem="L"):
        self._lab += 1
        return f"{self.name}_{stem}{self._lab}"

    def srd(self, sreg, ptr_sreg, nbytes):
        if sreg != ptr_sreg:
            self(f"s_mov_b32 {s(sreg)}, {s(ptr_sreg)}")
            self(f"s_mov_b32 {s(sreg + 1)}, {s(ptr_sreg + 1)}")
        self(f"s_mov_b32 {s(sreg + 2)}, {nbytes}")
        self(f"s_mov_b32 {s(sreg + 3)}, 0x00020000")

    def text(self):
        out = [f".globl {self.name}", ".p2align 8", f".type {self.name},@function", f"{self.name}:"]
        out += self.lines
        return "\n".join(out) + "\n"

    def desc(self):
        acc = (self.vgprs + 3) // 4 * 4
        nfv = acc + self.agprs if self.agprs else self.vgprs
        return f""".p2align 6
.amdhsa_kernel {self.name}
  .amdhsa_next_free_vgpr {nfv}
  .amdhsa_next_free_sgpr {self.sgprs}
  .amdhsa_accum_offset {acc}
  .amdhsa_group_segment_fixed_size 0
  .amdhsa_kernarg_size 104
  .amdhsa_user_sgpr_count 2
  .amdhsa_user_sgpr_kernarg_segment_ptr 1
  .amdhsa_system_sgpr_workgroup_id_x 1
.end_amdhsa_kernel
"""


def build(kernels, launches=None, single=False, notes=""):
    launches = launches or kernels
    out = HEADER_COMMENT
    for ln in notes.strip("\n").split("\n"):
        if ln.strip():
            out += "; " + ln + "\n"
    if single:
        k = launches[0]
        out += f"; @launch grid=({k.grid},1,1) block=({k.block},1,1) lds={k.lds}\n"
    else:
        for k in launches:
            out += f"; @launch kernel={k.name} grid=({k.grid},1,1) block=({k.block},1,1) lds={k.lds}\n"
    out += '.amdgcn_target "amdgcn-amd-amdhsa--gfx950"\n.text\n'
    for k in kernels:
        out += k.text()
    out += '.section .rodata,"a"\n'
    for k in kernels:
        out += k.desc()
    return out
```

```python
import sys
sys.path.insert(0, "gen")
from asmlib import *

XN, ABT, RR, HH, UPD, IDX = 0, 8 << 20, 16 << 20, (16 << 20) + 65536, (16 << 20) + 131072, (16 << 20) + 196608

def ldptr(k, names, base=4):
    regs = {}
    for i, n in enumerate(names):
        k(f"s_load_dwordx2 {s(base + 4 * i, 2)}, s[0:1], {KA[n]}")
        regs[n] = base + 4 * i
    k("s_waitcnt lgkmcnt(0)")
    for n in names:
        k.srd(regs[n], regs[n], SIZES[n])
    return {n: s(r, 4) for n, r in regs.items()}

def wave_sum(k, reg, tmp):
    for m in (1, 2, 4, 8, 16):
        k(f"ds_swizzle_b32 {v(tmp)}, {v(reg)} offset:{hex((m << 10) | 0x1f)}")
        k("s_waitcnt lgkmcnt(0)")
        k(f"v_add_f32 {v(reg)}, {v(reg)}, {v(tmp)}")
    k(f"v_mov_b32 {v(tmp)}, {v(reg)}")
    k("s_nop 1")
    k(f"v_permlane32_swap_b32 {v(tmp)}, {v(reg)}")
    k("s_nop 1")
    k(f"v_add_f32 {v(reg)}, {v(reg)}, {v(tmp)}")

def rbf(k, reg):
    k(f"v_cvt_pk_bf16_f32 {v(reg)}, {v(reg)}, {v(reg)}")
    k(f"v_and_b32 {v(reg)}, 0xffff0000, {v(reg)}")

def k_ln():
    k = Kernel("ln_kernel", 512, 256, vgprs=64)
    end = k.label("end")
    k(f"s_cmp_ge_u32 s2, 512\ns_cbranch_scc1 {end}")
    R = ldptr(k, ["x", "w_r", "ws"])
    k("v_lshrrev_b32 v1, 6, v0\nv_and_b32 v2, 63, v0")
    k("s_lshl_b32 s3, s2, 2\nv_add_u32 v1, s3, v1")
    k("v_lshlrev_b32 v3, 4, v2")
    k("v_lshl_add_u32 v4, v1, 11, v3")
    k(f"buffer_load_dwordx4 v[8:11], v4, {R['x']}, 0 offen")
    k(f"buffer_load_dwordx4 v[12:15], v4, {R['x']}, 0 offen offset:1024")
    k(f"buffer_load_dwordx4 v[16:19], v3, {R['w_r']}, 0 offen")
    k(f"buffer_load_dwordx4 v[20:23], v3, {R['w_r']}, 0 offen offset:1024")
    k("s_waitcnt vmcnt(0)")
    for i in range(8):
        k(f"v_lshlrev_b32 {v(24 + 2 * i)}, 16, {v(8 + i)}")
        k(f"v_and_b32 {v(25 + 2 * i)}, 0xffff0000, {v(8 + i)}")
    k("v_mov_b32 v5, 0")
    for i in range(16):
        k(f"v_add_f32 v5, v5, {v(24 + i)}")
    wave_sum(k, 5, 6)
    k("v_mul_f32 v5, 0x3a800000, v5")
    k("v_mov_b32 v7, 0")
    for i in range(16):
        k(f"v_sub_f32 v6, {v(24 + i)}, v5\nv_fmac_f32 v7, v6, v6")
    wave_sum(k, 7, 6)
    k("v_mul_f32 v7, 0x3a800000, v7")
    rbf(k, 5); rbf(k, 7)
    k("v_add_f32 v7, 0x3727c5ac, v7")
    rbf(k, 7)
    k("v_sqrt_f32 v7, v7\ns_nop 0")
    rbf(k, 7)
    k("v_rcp_f32 v7, v7\ns_nop 0")
    k("v_mov_b32 v40, 0")
    for i in range(16):
        k(f"v_sub_f32 {v(24 + i)}, {v(24 + i)}, v5")
        rbf(k, 24 + i)
        k(f"v_mul_f32 {v(24 + i)}, {v(24 + i)}, v7")
    for i in range(8):
        k(f"v_cvt_pk_bf16_f32 {v(8 + i)}, {v(24 + 2 * i)}, {v(25 + 2 * i)}")
        k(f"v_lshlrev_b32 v41, 16, {v(8 + i)}\nv_lshlrev_b32 v42, 16, {v(16 + i)}\nv_fmac_f32 v40, v41, v42")
        k(f"v_and_b32 v41, 0xffff0000, {v(8 + i)}\nv_and_b32 v42, 0xffff0000, {v(16 + i)}\nv_fmac_f32 v40, v41, v42")
    k(f"buffer_store_dwordx4 v[8:11], v4, {R['ws']}, 0 offen")
    k(f"buffer_store_dwordx4 v[12:15], v4, {R['ws']}, 0 offen offset:1024")
    wave_sum(k, 40, 6)
    k(f"v_lshlrev_b32 v1, 2, v1\nv_add_u32 v1, {RR}, v1")
    k(f"buffer_store_dword v40, v1, {R['ws']}, 0 offen")
    k(f"{end}:\ns_endpgm")
    return k

def gemm_tile(k, srdA, offA, srdB, offB, strideA32, strideB32, ksteps, acc, loopname):
    k(f"s_mov_b32 s40, 0\ns_mov_b32 s41, {strideA32}\ns_mov_b32 s42, {strideB32}")
    k(f"{loopname}:")
    k(f"buffer_load_dwordx4 v[8:11], {offA}, {srdA}, s40 offen")
    k(f"buffer_load_dwordx4 v[12:15], {offA}, {srdA}, s41 offen")
    k(f"buffer_load_dwordx4 v[16:19], {offB}, {srdB}, s40 offen")
    k(f"buffer_load_dwordx4 v[20:23], {offB}, {srdB}, s42 offen")
    k(f"buffer_load_dwordx4 v[24:27], {offA}, {srdA}, s40 offen offset:32")
    k(f"buffer_load_dwordx4 v[28:31], {offA}, {srdA}, s41 offen offset:32")
    k(f"buffer_load_dwordx4 v[32:35], {offB}, {srdB}, s40 offen offset:32")
    k(f"buffer_load_dwordx4 v[36:39], {offB}, {srdB}, s42 offen offset:32")
    k("s_add_u32 s40, s40, 64\ns_add_u32 s41, s41, 64\ns_add_u32 s42, s42, 64")
    for half, w in ((0, 4), (16, 0)):
        k(f"s_waitcnt vmcnt({w})")
        for i in range(2):
            for j in range(2):
                c = v(acc + 16 * (2 * i + j), 16)
                k(f"v_mfma_f32_32x32x16_bf16 {c}, {v(8 + half + 4 * i, 4)}, {v(16 + half + 4 * j, 4)}, {c}")
    k(f"s_cmp_lt_u32 s40, {ksteps * 32}\ns_cbranch_scc1 {loopname}")

def k_gemm1():
    k = Kernel("gemm1_kernel", 256, 256, vgprs=128)
    end = k.label("end")
    k(f"s_cmp_ge_u32 s2, 256\ns_cbranch_scc1 {end}")
    R = ldptr(k, ["hid_re", "hid_im", "ws"])
    k("v_lshrrev_b32 v1, 6, v0\ns_nop 0\nv_readfirstlane_b32 s3, v1")
    k("s_lshl_b32 s20, s2, 2\ns_add_u32 s20, s20, s3")
    k("s_lshr_b32 s21, s20, 5\ns_and_b32 s22, s20, 31")
    k("s_cmp_ge_u32 s22, 16")
    k("s_cselect_b32 s4, s8, s4\ns_cselect_b32 s5, s9, s5")
    k("v_and_b32 v2, 31, v0\nv_bfe_u32 v3, v0, 5, 1")
    k("s_lshl_b32 s23, s21, 6\nv_add_u32 v4, s23, v2\nv_lshlrev_b32 v4, 11, v4\nv_lshl_add_u32 v4, v3, 4, v4")
    k("s_and_b32 s24, s22, 15\ns_lshl_b32 s24, s24, 6\nv_add_u32 v5, s24, v2\nv_lshlrev_b32 v5, 11, v5\nv_lshl_add_u32 v5, v3, 4, v5")
    for i in range(64):
        k(f"v_mov_b32 {v(64 + i)}, 0")
    gemm_tile(k, R["ws"], "v4", R["hid_re"], "v5", 32 * 2048, 32 * 2048, 64, 64, k.label("loop"))
    k("s_nop 15")
    k("s_lshl_b32 s24, s22, 6\nv_add_u32 v6, s24, v2\nv_lshlrev_b32 v6, 12, v6\nv_lshl_add_u32 v6, v3, 3, v6")
    k(f"s_lshl_b32 s23, s21, 7\ns_add_u32 s23, s23, {ABT}\nv_add_u32 v6, s23, v6")
    k(f"v_add_u32 v7, {32 * 4096}, v6")
    for i in range(2):
        for j in range(2):
            c = 64 + 16 * (2 * i + j)
            for q in range(4):
                k(f"v_cvt_pk_bf16_f32 {v(c + 4 * q)}, {v(c + 4 * q)}, {v(c + 4 * q + 1)}")
                k(f"v_cvt_pk_bf16_f32 {v(c + 4 * q + 1)}, {v(c + 4 * q + 2)}, {v(c + 4 * q + 3)}")
                k(f"buffer_store_dwordx2 {v(c + 4 * q, 2)}, {'v7' if j else 'v6'}, {R['ws']}, 0 offen offset:{64 * i + 16 * q}")
    k(f"{end}:\ns_endpgm")
    return k

def top2(k, R):
    k(f"v_lshlrev_b32 v1, 5, v0\nv_add_u32 v1, {RR}, v1")
    k(f"buffer_load_dwordx4 v[8:11], v1, {R['ws']}, 0 offen")
    k(f"buffer_load_dwordx4 v[12:15], v1, {R['ws']}, 0 offen offset:16")
    k("s_waitcnt vmcnt(0)")
    k("s_mov_b32 s30, -1")
    for rnd in range(2):
        k("v_mov_b32 v16, 0xff800000\nv_mov_b32 v17, 0")
        for i in range(8):
            k(f"v_lshl_add_u32 v18, v0, 3, {i}")
            k(f"v_cmp_gt_f32 vcc, {v(8 + i)}, v16")
            k("v_cmp_ne_u32 s[34:35], s30, v18\ns_nop 1\ns_and_b64 vcc, vcc, s[34:35]\ns_nop 1")
            k(f"v_cndmask_b32 v16, v16, {v(8 + i)}, vcc\nv_cndmask_b32 v17, v17, v18, vcc")
        k("s_barrier\nv_lshlrev_b32 v19, 3, v0\nds_write_b64 v19, v[16:17]\ns_waitcnt lgkmcnt(0)\ns_barrier")
        lp = k.label("scan")
        k("v_mov_b32 v20, 0xff800000\nv_mov_b32 v21, 0\nv_mov_b32 v22, 0\ns_mov_b32 s36, 0")
        k(f"{lp}:")
        k("ds_read_b128 v[24:27], v22\nds_read_b128 v[28:31], v22 offset:16\ns_waitcnt lgkmcnt(0)")
        for b in (24, 26, 28, 30):
            k(f"v_cmp_gt_f32 vcc, {v(b)}, v20\ns_nop 1\nv_cndmask_b32 v20, v20, {v(b)}, vcc\nv_cndmask_b32 v21, v21, {v(b + 1)}, vcc")
        k(f"v_add_u32 v22, 32, v22\ns_add_u32 s36, s36, 1\ns_cmp_lt_u32 s36, 64\ns_cbranch_scc1 {lp}")
        k(f"s_nop 1\nv_readfirstlane_b32 {s(30 + rnd)}, v21\nv_readfirstlane_b32 {s(32 + rnd)}, v20\ns_nop 4")

def gemv_block(k, srds, nmat, rowstride, kper, ldsvec, lp):
    for i in range(4 * nmat):
        k(f"v_mov_b32 {v(32 + i)}, 0")
    k(f"s_mov_b32 s40, 0\ns_mov_b32 s41, 0")
    k(f"{lp}:")
    U = 8
    for u in range(U):
        for m in range(nmat):
            k(f"buffer_load_dword {v(40 + nmat * u + m)}, v4, {srds[m]}, s40 offen")
        k(f"s_add_u32 s40, s40, {rowstride}")
        k(f"ds_read_b64 {v(60 + 2 * u, 2)}, v5 offset:{8 * u}")
    k(f"v_add_u32 v5, {8 * U}, v5")
    k("s_waitcnt vmcnt(0) lgkmcnt(0)")
    for u in range(U):
        for m in range(nmat):
            w = 40 + nmat * u + m
            k(f"v_lshlrev_b32 v6, 16, {v(w)}\nv_and_b32 v7, 0xffff0000, {v(w)}")
            k(f"v_fmac_f32 {v(32 + 4 * m)}, v6, {v(60 + 2 * u)}\nv_fmac_f32 {v(33 + 4 * m)}, v7, {v(60 + 2 * u)}")
            k(f"v_fmac_f32 {v(34 + 4 * m)}, v6, {v(61 + 2 * u)}\nv_fmac_f32 {v(35 + 4 * m)}, v7, {v(61 + 2 * u)}")
    k(f"s_add_u32 s41, s41, {U}\ns_cmp_lt_u32 s41, {kper}\ns_cbranch_scc1 {lp}")

def lds_reduce(k, nacc, base):
    k("s_barrier\nv_lshlrev_b32 v6, 2, v0")
    for i in range(nacc):
        k(f"ds_write_b32 v6, {v(32 + i)} offset:{base + 1024 * i}")
    k("s_waitcnt lgkmcnt(0)\ns_barrier\nv_lshlrev_b32 v6, 2, v2")
    for i in range(nacc):
        for g in range(8):
            k(f"ds_read_b32 {v(40 + g)}, v6 offset:{base + 1024 * i + 128 * g}")
        k("s_waitcnt lgkmcnt(0)")
        k(f"v_add_f32 {v(32 + i)}, v40, v41")
        for g in range(2, 8):
            k(f"v_add_f32 {v(32 + i)}, {v(32 + i)}, {v(40 + g)}")

def k_gateup():
    k = Kernel("gateup_kernel", 56, 256, lds=32768, vgprs=96)
    end = k.label("end")
    k(f"s_cmp_ge_u32 s2, 56\ns_cbranch_scc1 {end}")
    R = ldptr(k, ["w_gate", "w_up", "ws"])
    top2(k, R)
    k("v_lshlrev_b32 v1, 3, v0\ns_lshl_b32 s36, s30, 11\ns_lshl_b32 s37, s31, 11")
    k(f"buffer_load_dwordx2 v[8:9], v1, {R['ws']}, s36 offen\nbuffer_load_dwordx2 v[10:11], v1, {R['ws']}, s37 offen")
    k("s_waitcnt vmcnt(0)")
    k("v_lshlrev_b32 v12, 16, v8\nv_lshlrev_b32 v13, 16, v10\nv_and_b32 v14, 0xffff0000, v8\nv_and_b32 v15, 0xffff0000, v10")
    k("v_lshlrev_b32 v16, 16, v9\nv_lshlrev_b32 v17, 16, v11\nv_and_b32 v18, 0xffff0000, v9\nv_and_b32 v19, 0xffff0000, v11")
    k("v_lshlrev_b32 v1, 5, v0\nds_write_b128 v1, v[12:15] offset:8192\nds_write_b128 v1, v[16:19] offset:8208")
    k("s_waitcnt lgkmcnt(0)\ns_barrier")
    k("v_and_b32 v2, 31, v0\nv_lshrrev_b32 v3, 5, v0")
    k(f"s_mov_b32 s36, {128 * 7168}\nv_mul_lo_u32 v4, v3, s36\nv_lshl_add_u32 v4, v2, 2, v4\ns_lshl_b32 s36, s2, 7\nv_add_u32 v4, s36, v4")
    k("v_lshlrev_b32 v5, 10, v3\nv_add_u32 v5, 8192, v5")
    gemv_block(k, [R["w_gate"], R["w_up"]], 2, 7168, 128, 8192, k.label("lp"))
    lds_reduce(k, 8, 16384)
    for i in range(4):
        g, u = 32 + i, 36 + i
        rbf(k, g); rbf(k, u)
        k(f"v_mul_f32 v6, 0xbfb8aa3b, {v(g)}\nv_exp_f32 v6, v6\ns_nop 0\nv_add_f32 v6, 1.0, v6\nv_rcp_f32 v6, v6\ns_nop 0\nv_mul_f32 {v(g)}, {v(g)}, v6")
        rbf(k, g)
        k(f"v_mul_f32 {v(g)}, {v(g)}, {v(u)}")
        rbf(k, g)
    k("v_mov_b32 v36, v32\nv_mov_b32 v37, v34\nv_mov_b32 v38, v33\nv_mov_b32 v39, v35")
    k(f"s_lshl_b32 s36, s2, 9\ns_add_u32 s36, s36, {HH}\nv_lshlrev_b32 v6, 4, v2")
    k("v_cmp_gt_u32 vcc, 32, v0\ns_and_saveexec_b64 s[34:35], vcc")
    k(f"s_cbranch_execz {end}")
    k(f"buffer_store_dwordx4 v[36:39], v6, {R['ws']}, s36 offen")
    k("v_mov_b32 v8, s30\nv_mov_b32 v9, s31\nv_mov_b32 v10, s32\nv_mov_b32 v11, s33")
    k(f"v_mov_b32 v6, {IDX}\nbuffer_store_dwordx4 v[8:11], v6, {R['ws']}, 0 offen")
    k(f"{end}:\ns_endpgm")
    return k

def k_down():
    k = Kernel("down_kernel", 16, 256, lds=49152, vgprs=96)
    end = k.label("end")
    k(f"s_cmp_ge_u32 s2, 16\ns_cbranch_scc1 {end}")
    R = ldptr(k, ["w_down", "ws"])
    k(f"v_lshlrev_b32 v1, 4, v0\nv_add_u32 v2, {HH}, v1")
    for i in range(7):
        k(f"buffer_load_dwordx4 {v(8 + 4 * i, 4)}, v2, {R['ws']}, 0 offen\nv_add_u32 v2, 4096, v2")
    k(f"v_mov_b32 v6, {IDX}\nbuffer_load_dwordx4 v[80:83], v6, {R['ws']}, 0 offen")
    k("s_waitcnt vmcnt(0)")
    for i in range(7):
        k(f"ds_write_b128 v1, {v(8 + 4 * i, 4)} offset:{4096 * i}")
    k("s_waitcnt lgkmcnt(0)\ns_barrier")
    k("v_and_b32 v2, 31, v0\nv_lshrrev_b32 v3, 5, v0")
    k(f"s_mov_b32 s36, {448 * 2048}\nv_mul_lo_u32 v4, v3, s36\nv_lshl_add_u32 v4, v2, 2, v4\ns_lshl_b32 s36, s2, 7\nv_add_u32 v4, s36, v4")
    k(f"s_mov_b32 s36, {448 * 8}\nv_mul_lo_u32 v5, v3, s36")
    gemv_block(k, [R["w_down"]], 1, 2048, 448, 0, k.label("lp"))
    lds_reduce(k, 4, 32768)
    for t in range(2):
        rbf(k, 82 + t)
        k(f"v_mul_f32 v6, 0xbfb8aa3b, {v(82 + t)}\nv_exp_f32 v6, v6\ns_nop 0\nv_add_f32 v6, 1.0, v6\nv_rcp_f32 v6, v6\ns_nop 0")
        rbf(k, 6)
        for i in range(2):
            rbf(k, 32 + 2 * t + i)
            k(f"v_mul_f32 {v(32 + 2 * t + i)}, {v(32 + 2 * t + i)}, v6")
            rbf(k, 32 + 2 * t + i)
    k(f"s_lshl_b32 s36, s2, 8\ns_add_u32 s36, s36, {UPD}\nv_lshlrev_b32 v6, 3, v2\nv_add_u32 v7, 4096, v6")
    k("v_cmp_gt_u32 vcc, 32, v0\ns_and_saveexec_b64 s[34:35], vcc")
    k(f"s_cbranch_execz {end}")
    k(f"buffer_store_dwordx2 v[32:33], v6, {R['ws']}, s36 offen")
    k(f"buffer_store_dwordx2 v[34:35], v7, {R['ws']}, s36 offen")
    k(f"{end}:\ns_endpgm")
    return k

def k_gemm2():
    k = Kernel("gemm2_kernel", 128, 256, vgprs=224)
    end = k.label("end")
    k(f"s_cmp_ge_u32 s2, 128\ns_cbranch_scc1 {end}")
    R = ldptr(k, ["seq_re", "seq_im", "ws", "x", "out"])
    k("v_lshrrev_b32 v1, 6, v0\ns_nop 0\nv_readfirstlane_b32 s3, v1")
    k("s_lshl_b32 s30, s2, 2\ns_add_u32 s30, s30, s3")
    k("s_lshr_b32 s31, s30, 4\ns_and_b32 s32, s30, 15")
    k("v_and_b32 v2, 31, v0\nv_bfe_u32 v3, v0, 5, 1")
    k(f"s_lshl_b32 s33, s32, 6\nv_add_u32 v4, s33, v2\nv_lshlrev_b32 v4, 12, v4\nv_lshl_add_u32 v4, v3, 4, v4\nv_add_u32 v4, {ABT}, v4")
    k("s_lshl_b32 s34, s31, 6\nv_add_u32 v5, s34, v2\nv_lshlrev_b32 v5, 12, v5\nv_lshl_add_u32 v5, v3, 4, v5")
    for i in range(128):
        k(f"v_mov_b32 {v(64 + i)}, 0")
    gemm_tile(k, R["ws"], "v4", R["seq_re"], "v5", 32 * 4096, 32 * 4096, 128, 64, k.label("loop"))
    k(f"v_add_u32 v4, {1024 * 4096}, v4")
    gemm_tile(k, R["ws"], "v4", R["seq_im"], "v5", 32 * 4096, 32 * 4096, 128, 128, k.label("loop"))
    k(f"v_mov_b32 v6, {IDX}\nbuffer_load_dwordx2 v[40:41], v6, {R['ws']}, 0 offen")
    k("s_nop 15")
    for j in range(2):
        k(f"v_add_u32 v6, s34, v2\nv_add_u32 v6, {32 * j}, v6")
        k("v_lshlrev_b32 v7, 11, v6\nv_lshl_add_u32 v7, v3, 3, v7\ns_lshl_b32 s35, s32, 7\nv_add_u32 v7, s35, v7")
        k(f"s_lshl_b32 s35, s32, 8\ns_add_u32 s35, s35, {UPD}\nv_lshlrev_b32 v42, 4, v3\nv_add_u32 v42, s35, v42\nv_add_u32 v43, 4096, v42")
        k("s_waitcnt vmcnt(0)")
        k("v_cmp_eq_u32 s[36:37], v6, v40\nv_cmp_eq_u32 s[38:39], v6, v41")
        for i in range(2):
            for q in range(4):
                c = 64 + 16 * (2 * i + j) + 4 * q
                off = 64 * i + 16 * q
                k(f"buffer_load_dwordx2 v[8:9], v7, {R['x']}, 0 offen offset:{off}")
                k(f"buffer_load_dwordx2 v[10:11], v7, {R['ws']}, 0 offen offset:{off}")
                k(f"buffer_load_dwordx4 v[12:15], v42, {R['ws']}, 0 offen offset:{2 * off}")
                k(f"buffer_load_dwordx4 v[16:19], v43, {R['ws']}, 0 offen offset:{2 * off}")
                k("s_waitcnt vmcnt(0)")
                for r in range(4):
                    rbf(k, c + r); rbf(k, c + 64 + r)
                    k(f"v_sub_f32 {v(c + r)}, {v(c + r)}, {v(c + 64 + r)}")
                    rbf(k, c + r)
                    src, srn = 8 + r // 2, 10 + r // 2
                    if r & 1:
                        k(f"v_and_b32 v20, 0xffff0000, {v(src)}\nv_and_b32 v21, 0xffff0000, {v(srn)}")
                    else:
                        k(f"v_lshlrev_b32 v20, 16, {v(src)}\nv_lshlrev_b32 v21, 16, {v(srn)}")
                    k(f"v_add_f32 {v(c + r)}, {v(c + r)}, v20")
                    rbf(k, c + r)
                    k(f"v_cndmask_b32 v22, 0, {v(12 + r)}, s[36:37]\nv_cndmask_b32 v22, v22, {v(16 + r)}, s[38:39]")
                    k("v_add_f32 v21, v21, v22")
                    rbf(k, 21)
                    k(f"v_add_f32 {v(c + r)}, {v(c + r)}, v21")
                k(f"v_cvt_pk_bf16_f32 {v(c)}, {v(c)}, {v(c + 1)}\nv_cvt_pk_bf16_f32 {v(c + 1)}, {v(c + 2)}, {v(c + 3)}")
                k(f"buffer_store_dwordx2 {v(c, 2)}, v7, {R['out']}, 0 offen offset:{off}")
    k(f"{end}:\ns_endpgm")
    return k

def k_empty():
    k = Kernel("empty_kernel", 256, 256, vgprs=8)
    k("s_endpgm")
    return k

if __name__ == "__main__":
    n_empty = int(sys.argv[1]) if len(sys.argv) > 1 else 0
    ks = [k_ln(), k_gemm1(), k_gateup(), k_down(), k_gemm2()]
    launches = list(ks)
    if n_empty:
        e = k_empty(); ks.append(e); launches = launches + [e] * n_empty
    sys.stdout.write(build(ks, launches))
```

```python
import re

TRANS = ("v_exp_", "v_log_", "v_rcp_", "v_rsq_", "v_sqrt_", "v_sin_", "v_cos_")
REG = re.compile(r"^(-|\|)*([vsa])(\d+|\[(\d+):(\d+)\])\|?$")


def regs_of(tok):
    tok = tok.strip()
    m = REG.match(tok)
    if m:
        k = m.group(2)
        if m.group(4) is not None:
            return {(k, i) for i in range(int(m.group(4)), int(m.group(5)) + 1)}
        return {(k, int(m.group(3)))}
    t = tok.lstrip("-|").rstrip("|")
    if t == "vcc":
        return {("s", "vcc_lo"), ("s", "vcc_hi")}
    if t in ("vcc_lo", "vcc_hi"):
        return {("s", t)}
    if t == "exec":
        return {("s", "exec_lo"), ("s", "exec_hi")}
    if t in ("exec_lo", "exec_hi"):
        return {("s", t)}
    if t == "m0":
        return {("s", "m0")}
    return set()


class Ins:
    def __init__(self, text):
        self.text = text
        t = text.split(";")[0].strip()
        self.label = t.endswith(":")
        self.op = ""
        self.states = 0
        self.w, self.r = set(), set()
        self.kind = "none"
        if self.label or not t or t.startswith("."):
            return
        parts = t.split(None, 1)
        op = self.op = parts[0]
        rest = parts[1] if len(parts) > 1 else ""
        ops = [o.strip() for o in rest.split(",")] if rest else []
        mods = ""
        if ops:
            m = re.search(r"\s(quad_perm|row_|op_sel|neg_|offen|offset|off\b|sc0|sc1|nt\b|lds\b|dst_sel|src0_sel|clamp|bitop3|cbsz|blgp|bound_ctrl|mul:|div:)", " " + rest)
            if m:
                cut = m.start()
                mods = rest[cut:]
                rest = rest[:cut]
            ops = [o.strip() for o in rest.split(",") if o.strip()]
        self.ops, self.mods = ops, mods
        self.states = 1
        R = [regs_of(o) for o in ops]
        self.dpp = "quad_perm" in mods or "row_" in mods
        if op == "s_nop":
            self.kind = "nop"
            self.states = int(ops[0]) + 1
        elif op.startswith("s_cbranch") or op == "s_branch":
            self.kind = "branch"
            self.target = ops[0]
        elif op.startswith("s_"):
            self.kind = "salu"
            if op.startswith(("s_cmp", "s_waitcnt", "s_barrier", "s_endpgm", "s_setprio", "s_sleep", "s_bitcmp")):
                self.r = set().union(*R) if R else set()
            else:
                self.w = R[0] if R else set()
                self.r = set().union(*R[1:]) if len(R) > 1 else set()
                if "saveexec" in op:
                    self.w |= regs_of("exec")
        elif op.startswith("v_mfma"):
            self.kind = "mfma"
            self.w = R[0]
            self.A, self.B, self.C = R[1], R[2], R[3]
            self.r = R[1] | R[2] | R[3]
            self.passes = 8 if "32x32x16" in op else 4 if "16x16x32" in op else None
            assert self.passes, op
        elif op.startswith("v_"):
            self.kind = "valu"
            self.trans = op.startswith(TRANS)
            self.dot = op.startswith("v_dot")
            self.perml = op.startswith("v_permlane")
            self.rdlane = op.startswith(("v_readlane", "v_readfirstlane"))
            self.opsel = "sdwa" in op or "op_sel" in mods
            assert not op.startswith("v_cmpx"), "v_cmpx not modelled"
            self.w = set(R[0])
            self.r = set().union(*R[1:]) if len(R) > 1 else set()
            if self.perml:
                self.w = R[0] | R[1]
                self.r = R[0] | R[1]
            if op.startswith(("v_fmac", "v_dot2c", "v_mac", "v_writelane")) or self.dpp:
                self.r |= R[0]
            if op.startswith("v_cndmask") and len(ops) == 3:
                self.r |= regs_of("vcc")
            if "_co_" in op:
                self.w |= R[1]
            if self.dot:
                if op.startswith("v_dot2c"):
                    self.AB, self.Cc = R[1] | R[2], R[0]
                else:
                    self.AB, self.Cc = R[1] | R[2], R[3]
            if op.startswith("v_readlane"):
                self.lanesel = R[2]
        elif op.startswith("ds_"):
            self.kind = "ds"
            if op.startswith(("ds_read", "ds_bpermute", "ds_permute", "ds_swizzle")) or "_rtn" in op:
                self.w = R[0]
                self.r = set().union(*R[1:])
            else:
                self.r = set().union(*R)
        elif op.startswith(("buffer_", "global_")):
            self.kind = "vmem"
            self.lds = bool(re.search(r"\blds\b", mods)) or "_lds_" in op
            if "load" in op and not self.lds:
                self.w = R[0]
                self.r = set().union(*R[1:])
            else:
                self.r = set().union(*R)
            self.wide = set()
            if "store" in op and ("x3" in op or "x4" in op):
                self.wide = R[0] if op.startswith("buffer_") else R[1]
        else:
            raise ValueError("unknown instruction: " + text)


def vg(s):
    return {x for x in s if x[0] in "va"}


def sg(s):
    return {x for x in s if x[0] == "s"}


def need(p, c):
    n = 0
    pk, ck = p.kind, c.kind
    if pk == "vmem" and p.wide and (p.wide & c.w):
        n = max(n, 2 if ck in ("valu", "mfma") else 1)
    if pk == "salu" and ("s", "m0") in p.w and ck == "vmem" and c.lds:
        n = max(n, 1)
    if pk == "valu":
        ws, wv = sg(p.w), vg(p.w)
        if ck == "vmem" and ws & c.r:
            n = max(n, 5)
        if ck == "valu":
            if ws & c.r:
                n = max(n, 2)
            if getattr(c, "lanesel", None) and ws & c.lanesel:
                n = max(n, 4)
            if c.dpp and wv & c.r:
                n = max(n, 2)
            if c.rdlane and wv & c.r:
                n = max(n, 1)
            if c.perml and wv & c.r:
                n = max(n, 2)
            if p.opsel and wv & (c.r | c.w):
                n = max(n, 1)
            if p.trans and not c.trans and wv & c.r:
                n = max(n, 1)
        if ck in ("ds", "vmem") and p.trans and wv & c.r:
            n = max(n, 1)
        if ck == "mfma" and wv & c.r:
            n = max(n, 2)
        if p.dot:
            if ck == "valu" and c.dot and c.op == p.op:
                if wv & c.AB:
                    n = max(n, 3)
            elif wv & (c.r | c.w):
                n = max(n, 3)
    if pk in ("ds", "vmem") and ck == "valu" and c.dpp and vg(p.w) & c.r:
        n = max(n, 2)
    if pk == "mfma":
        big = {4: 8, 8: 12}[p.passes]
        if ck == "mfma":
            if p.w & (c.A | c.B):
                n = max(n, big)
            if p.w & c.C and not (p.w == c.C and p.passes == c.passes):
                n = max(n, big - 2)
            if p.w & c.w and not (p.w == c.w and p.w == c.C and p.passes == c.passes):
                n = max(n, big - 2)
        elif ck in ("valu", "ds", "vmem"):
            if p.w & (c.r | c.w):
                n = max(n, big)
            if ck == "valu" and p.C & c.w:
                n = max(n, {4: 3, 8: 7}[p.passes])
            if ck in ("ds", "vmem") and p.C & c.w:
                n = max(n, {4: 3, 8: 7}[p.passes])
    return n


def required(hist, c):
    n, dist = 0, 0
    for p in reversed(hist):
        if dist >= 20:
            break
        n = max(n, need(p, c) - dist)
        dist += p.states
    return n


def trim(hist):
    out, d = [], 0
    for p in reversed(hist):
        out.append(p)
        d += p.states
        if d >= 24:
            break
    return out[::-1]


def nops(n):
    out = []
    while n > 0:
        k = min(n, 16)
        out.append(Ins(f"    s_nop {k - 1}"))
        n -= k
    return out


def pad(lines):
    ins = [Ins(l) for l in lines]
    labels = {i.text.strip()[:-1]: k for k, i in enumerate(ins) if i.label}
    out, hists, pending, seen = [], [[]], {}, set()
    total = 0
    for k, c in enumerate(ins):
        if c.label:
            name = c.text.strip()[:-1]
            seen.add(name)
            hists = hists + pending.pop(name, [])
            out.append(c)
            continue
        if c.kind == "none":
            out.append(c)
            continue
        n = max((required(h, c) for h in hists), default=0)
        if c.kind == "branch" and c.target in seen:
            follow = [i for i in ins[labels[c.target] + 1: labels[c.target] + 40] if i.kind != "none"]
            for h in hists:
                hh = list(h) + [c]
                for f in follow:
                    n = max(n, required(hh, f))
                    hh.append(f)
                    if f.kind == "branch":
                        break
        pads = nops(n)
        total += n
        out.extend(pads)
        out.append(c)
        hists = [trim(h + pads + [c]) for h in hists]
        if c.kind == "branch" and c.target not in seen:
            pending.setdefault(c.target, []).extend([list(h) for h in hists])
        if c.op in ("s_branch", "s_endpgm"):
            hists = []
        if len(hists) > 8:
            uniq = {tuple(id(x) for x in h): h for h in hists}
            hists = list(uniq.values())
    assert not pending, pending.keys()
    return [i.text for i in out], total
```

```python
import struct
import sys
sys.path.insert(0, "gen")
from asmlib import Kernel, build, KA, SIZES, v, s
import hazard

NAME = "parallel_sum__spectral_fnet__moe_arch_mod__prompt_kernel"

XS, T1, T2, MISC, WBASE = 0, 32768, 49408, 58112, 61440
M_RS, M_KEY, M_SEL, M_MEAN, M_XCH, M_FIN = MISC, MISC + 64, MISC + 128, MISC + 160, MISC + 256, MISC + 2304
LDS_BYTES = WBASE + 3 * 32768
W_U, W_STATS, W_EPOCH, W_GRAN, W_PART, W_END, W_PROF = 0, 0x200000, 0x208000, 0x210000, 0x220000, 0x300000, 0x400000
SPIN = 4096


def fl(x):
    return hex(struct.unpack("<I", struct.pack("<f", x))[0])


class Alloc:
    def __init__(self, first, limit):
        self.busy = [i < first for i in range(limit)]
        self.top = first

    def __call__(self, n=1, align=None):
        al = align or (2 if n > 1 else 1)
        if n == 1:
            for b in range(len(self.busy) - 1):
                if not self.busy[b] and self.busy[b ^ 1] and b < self.top:
                    self.busy[b] = True
                    return b
        for b in range(0, len(self.busy) - n + 1, al):
            if not any(self.busy[b:b + n]):
                for i in range(b, b + n):
                    self.busy[i] = True
                self.top = max(self.top, b + n)
                return b
        raise RuntimeError("out of registers")

    def free(self, b, n=1):
        for i in range(b, b + n):
            assert self.busy[i], i
            self.busy[i] = False


class Counter:
    def __init__(self, k, name, cap):
        self.k, self.name, self.cap = k, name, cap
        self.n, self.done, self.tags, self.dirty = 0, 0, {}, False

    def issue(self, text, tag=None):
        self.k(text)
        self.n += 1
        if tag:
            self.tags[tag] = self.n

    def wait(self, *tags):
        tgt = max(self.tags[t] for t in tags)
        if tgt <= self.done:
            return
        left = self.n - tgt
        if self.dirty:
            left, self.dirty = 0, False
        left = min(left, self.cap)
        self.k(f"s_waitcnt {self.name}({left})")
        self.done = self.n - left

    def all(self):
        if self.done < self.n or self.dirty:
            self.k(f"s_waitcnt {self.name}(0)")
        self.done, self.dirty = self.n, False


DEFAULT = dict(
    prof=False,
    sched=dict(pro=4, bar1=0, bar1b=0, ust=2, c2=2, sel=4),
    wnt=False, outflag="", pads=False, early_bar=True,
)


def gen(path, **over):
    P = dict(DEFAULT)
    P.update(over)
    prof = P["prof"]
    k = Kernel(NAME, 256, 576, lds=LDS_BYTES)
    V = Alloc(1, 168)
    S = Alloc(32, 102)
    vm, lg = Counter(k, "vmcnt", 63), Counter(k, "lgkmcnt", 15)
    X, WS, WG, WU, WD, OUT, WR = (s(i, 4) for i in (4, 8, 12, 16, 20, 24, 28))
    stamps = []
    sStamp = S(30, 2) if prof else None

    def stamp(lgc, name):
        if prof:
            i = len(stamps)
            assert i < 15
            k(f"s_memrealtime {s(sStamp + 2 * i, 2)}")
            stamps.append(name)
            lgc.dirty = True

    def stamp_flush(lgc, slot_sreg, names):
        t, a = V(), V()
        k("s_mov_b64 exec, -1")
        k("s_waitcnt lgkmcnt(0)")
        k(f"v_mov_b32 {v(t)}, 0")
        for i in range(len(names)):
            k(f"v_writelane_b32 {v(t)}, {s(sStamp + 2 * i)}, {i}")
        k(f"v_lshlrev_b32 {v(a)}, 2, {v(vL)}")
        k("s_lshl_b32 s3, s2, 4")
        k(f"s_add_u32 s3, s3, {s(slot_sreg)}")
        k("s_lshl_b32 s3, s3, 6")
        k(f"s_add_u32 s3, s3, {W_PROF}")
        k("s_mov_b64 exec, 0xffff")
        k(f"buffer_store_dword {v(t)}, {v(a)}, {WS}, s3 offen")
        k("s_mov_b64 exec, -1")
        V.free(t), V.free(a)

    sW, sX8, sU, sHF, sQ, sRP, sT, sT2 = (S() for _ in range(8))
    vL = V()
    k("s_cmp_ge_u32 s2, 256")
    k("s_cbranch_scc1 END")
    stamp(lg, "start")
    for reg, nm in ((4, "x"), (28, "w_r"), (8, "ws"), (12, "w_gate"), (16, "w_up"), (20, "w_down"), (24, "out")):
        k(f"s_load_dwordx2 {s(reg, 2)}, s[0:1], {KA[nm]}")
    t0 = V()
    k(f"v_lshrrev_b32 {v(t0)}, 6, v0")
    k(f"v_and_b32 {v(vL)}, 63, v0")
    k(f"s_and_b32 {s(sX8)}, s2, 7")
    k(f"v_readfirstlane_b32 {s(sW)}, {v(t0)}")
    k(f"s_lshr_b32 {s(sT)}, s2, 4")
    k(f"s_lshl3_add_u32 {s(sQ)}, {s(sT)}, {s(sX8)}")
    k(f"s_lshr_b32 {s(sU)}, s2, 3")
    k(f"s_and_b32 {s(sHF)}, {s(sU)}, 1")
    k(f"s_cmp_eq_u32 {s(sQ)}, 0")
    k(f"s_cselect_b32 {s(sT)}, 128, {s(sQ)}")
    k(f"s_sub_u32 {s(sRP)}, 2048, {s(sT)}")
    k(f"s_mov_b32 s6, {SIZES['x']}")
    k("s_mov_b32 s7, 0x00020000")
    k(f"s_mov_b32 s10, {W_PROF + 0x100000 if prof else W_END}")
    k("s_mov_b32 s11, 0x00020000")
    k(f"s_mov_b32 s26, {SIZES['out']}")
    k("s_mov_b32 s27, 0x00020000")
    k(f"s_cmp_eq_u32 {s(sW)}, 8")
    k("s_cbranch_scc1 COMM")
    V.free(t0)
    common = (list(V.busy), list(S.busy), list(stamps))

    sOwn, sOth, sLo, sGU, sDN, sWm, sSl = (S() for _ in range(7))
    vXo = V()
    k(f"s_lshl_b32 {s(sT)}, {s(sW)}, 8")
    k(f"s_add_u32 {s(sOwn)}, {s(sQ)}, {s(sT)}")
    k(f"s_sub_u32 {s(sT)}, {s(sRP)}, {s(sT)}")
    k(f"s_cmp_eq_u32 {s(sHF)}, 0")
    k(f"s_cselect_b32 {s(sOth)}, {s(sT)}, {s(sOwn)}")
    k(f"s_cselect_b32 {s(sOwn)}, {s(sOwn)}, {s(sT)}")
    k(f"s_lshl_b32 {s(sLo)}, {s(sW)}, 11")
    k(f"s_lshl_b32 {s(sT)}, {s(sHF)}, 14")
    k(f"s_add_u32 {s(sLo)}, {s(sLo)}, {s(sT)}")
    t0 = V()
    k(f"v_and_b32 {v(t0)}, 32, {v(vL)}")
    k(f"v_lshlrev_b32 {v(vXo)}, 4, {v(vL)}")
    k(f"v_xor_b32 {v(vXo)}, {v(vXo)}, {v(t0)}")
    V.free(t0)
    k(f"s_mov_b32 m0, {s(sLo)}")
    k(f"s_lshl_b32 {s(sT)}, {s(sOwn)}, 11")
    k(f"s_lshl_b32 {s(sT2)}, {s(sOth)}, 11")
    k(f"s_mov_b32 s30, {SIZES['w_r']}")
    k("s_mov_b32 s31, 0x00020000")
    k("s_waitcnt lgkmcnt(0)")
    lg.dirty = False
    vWr = V(8)
    vm.issue(f"buffer_load_dwordx4 {v(vXo)}, {X}, {s(sT)} offen lds")
    vm.issue(f"buffer_load_dwordx4 {v(vXo)}, {X}, {s(sT)} offen offset:1024 lds")
    vm.issue(f"buffer_load_dwordx4 {v(vWr, 4)}, {v(vXo)}, {WR}, 0 offen")
    vm.issue(f"buffer_load_dwordx4 {v(vWr + 4, 4)}, {v(vXo)}, {WR}, 0 offen offset:1024", "own")
    k(f"s_xor_b32 m0, {s(sLo)}, 16384")
    vm.issue(f"buffer_load_dwordx4 {v(vXo)}, {X}, {s(sT2)} offen lds")
    vm.issue(f"buffer_load_dwordx4 {v(vXo)}, {X}, {s(sT2)} offen offset:1024 lds", "oth")
    V.free(vXo)

    k("s_cmp_lt_u32 s2, 224")
    k(f"s_cselect_b32 s14, {SIZES['w_gate']}, 0")
    k("s_mov_b32 s15, 0x00020000")
    k("s_mov_b32 s18, s14")
    k("s_mov_b32 s19, 0x00020000")
    k("s_mov_b32 s22, s14")
    k("s_mov_b32 s23, 0x00020000")
    k(f"s_mul_i32 {s(sSl)}, {s(sX8)}, 28")
    k(f"s_add_u32 {s(sSl)}, {s(sSl)}, {s(sU)}")
    k(f"s_mul_i32 {s(sGU)}, {s(sW)}, {128 * 7168}")
    k(f"s_lshl_b32 {s(sT)}, {s(sSl)}, 5")
    k(f"s_add_u32 {s(sGU)}, {s(sGU)}, {s(sT)}")
    k(f"s_lshl_b32 {s(sDN)}, {s(sSl)}, 15")
    k(f"s_lshl_b32 {s(sT)}, {s(sW)}, 8")
    k(f"s_add_u32 {s(sDN)}, {s(sDN)}, {s(sT)}")
    k(f"s_lshl_b32 {s(sWm)}, {s(sW)}, 12")
    k(f"s_add_u32 {s(sWm)}, {s(sWm)}, {WBASE}")
    vN, vG, vR, vC, vG1 = V(), V(), V(), V(), V()
    vDg, vDd = V(), V()
    a, b = V(), V()
    k(f"v_lshrrev_b32 {v(a)}, 1, {v(vL)}")
    k(f"v_and_b32 {v(a)}, 0x13, {v(a)}")
    k(f"v_and_or_b32 {v(a)}, {v(vL)}, 8, {v(a)}")
    k(f"v_lshrrev_b32 {v(vR)}, 2, {v(vL)}")
    k(f"v_and_or_b32 {v(a)}, {v(vR)}, 4, {v(a)}")
    k(f"v_mul_u32_u24 {v(a)}, 7168, {v(a)}")
    k(f"v_and_b32 {v(b)}, 1, {v(vL)}")
    k(f"v_lshl_add_u32 {v(vDg)}, {v(b)}, 4, {v(a)}")
    k(f"v_and_b32 {v(vN)}, 15, {v(vL)}")
    k(f"v_lshrrev_b32 {v(vG)}, 4, {v(vL)}")
    k(f"v_and_b32 {v(vR)}, 3, {v(vR)}")
    k(f"v_and_b32 {v(vC)}, 3, {v(vL)}")
    k(f"v_and_b32 {v(vG1)}, 1, {v(vG)}")
    k(f"v_lshlrev_b32 {v(a)}, 2, {v(vG)}")
    k(f"v_xor_b32 {v(a)}, {v(a)}, {v(vN)}")
    k(f"v_lshlrev_b32 {v(a)}, 4, {v(a)}")
    k(f"v_lshl_add_u32 {v(vDd)}, {v(vG)}, 11, {v(a)}")
    V.free(a), V.free(b)
    wq = [("g", ks) for ks in range(4)]
    wq = [x for ks in range(4) for x in (("g", ks), ("u", ks))] + [("d", i) for i in range(4)]
    sWo = S()
    nt = " nt" if P["wnt"] else ""

    def wdma(n=1):
        for _ in range(n):
            if not wq:
                return
            m, i = wq.pop(0)
            if m == "g":
                k(f"s_add_u32 m0, {s(sWm)}, {i * 1024}")
                k(f"s_add_u32 {s(sWo)}, {s(sGU)}, {i * 32 * 7168}")
                vm.issue(f"buffer_load_dwordx4 {v(vDg)}, {WG}, {s(sWo)} offen lds{nt}", f"g{i}")
            elif m == "u":
                k(f"s_add_u32 m0, {s(sWm)}, {32768 + i * 1024}")
                k(f"s_add_u32 {s(sWo)}, {s(sGU)}, {i * 32 * 7168}")
                vm.issue(f"buffer_load_dwordx4 {v(vDg)}, {WU}, {s(sWo)} offen lds{nt}", f"u{i}")
            else:
                k(f"s_add_u32 m0, {s(sWm)}, {65536 + i * 1024}")
                k(f"s_add_u32 {s(sWo)}, {s(sDN)}, {i * 8192}")
                vm.issue(f"buffer_load_dwordx4 {v(vDd)}, {WD}, {s(sWo)} offen lds{nt}", f"d{i}")

    sched = P["sched"]
    wdma(sched.get("pro", 0))

    def trig_pack(dst_cos, dst_sin, args):
        tc = V(2)
        for j in range(0, 8, 2):
            if dst_sin is not None:
                k(f"v_sin_f32 {v(tc)}, {v(args + j)}")
                k(f"v_sin_f32 {v(tc + 1)}, {v(args + j + 1)}")
            k(f"v_cos_f32 {v(args + j)}, {v(args + j)}")
            k(f"v_cos_f32 {v(args + j + 1)}, {v(args + j + 1)}")
            if dst_sin is not None:
                k(f"v_cvt_pk_bf16_f32 {v(dst_sin + j // 2)}, {v(tc)}, {v(tc + 1)}")
            k(f"v_cvt_pk_bf16_f32 {v(dst_cos + j // 2)}, {v(args + j)}, {v(args + j + 1)}")
        V.free(tc, 2)

    vKA = V(4)
    arg = V(8)
    f, ph, a = V(), V(), V()
    sE1 = S()
    k(f"s_lshl_b32 {s(sE1)}, {s(sHF)}, 3")
    k(f"s_cmp_eq_u32 {s(sHF)}, 0")
    k(f"s_cselect_b32 {s(sT)}, 1, 99")
    k(f"v_lshrrev_b32 {v(f)}, 1, {v(vN)}")
    k(f"v_add_u32 {v(f)}, {s(sE1)}, {v(f)}")
    k(f"v_and_b32 {v(ph)}, 1, {v(vN)}")
    k(f"v_cmp_ne_u32 vcc, {s(sT)}, {v(vN)}")
    k(f"v_cndmask_b32 {v(f)}, 16, {v(f)}, vcc")
    k(f"v_cndmask_b32 {v(ph)}, 0, {v(ph)}, vcc")
    k(f"v_cvt_f32_u32 {v(f)}, {v(f)}")
    k(f"v_cvt_f32_u32 {v(ph)}, {v(ph)}")
    k(f"v_cvt_f32_u32 {v(a)}, {v(vG)}")
    k(f"v_mul_f32 {v(f)}, {fl(1 / 32)}, {v(f)}")
    k(f"v_mul_f32 {v(ph)}, {fl(0.25)}, {v(ph)}")
    vG4f = V()
    k(f"v_mul_f32 {v(vG4f)}, 4.0, {v(a)}")
    k(f"v_add_f32 {v(a)}, {v(vG4f)}, {v(vG4f)}")
    k(f"v_fma_f32 {v(arg)}, {v(f)}, {v(a)}, {v(ph)}")
    for j in range(1, 8):
        k(f"v_add_f32 {v(arg + j)}, {v(arg + j - 1)}, {v(f)}")
    trig_pack(vKA, None, arg)
    vMk, vInv = V(), V()
    k(f"s_add_u32 {s(sT)}, {s(sT)}, -1")
    k(f"v_cmp_ne_u32 vcc, {s(sT)}, {v(vN)}")
    k(f"v_mov_b32 {v(vMk)}, {fl(-32.0)}")
    k(f"v_mov_b32 {v(vInv)}, {fl(1 / 1024)}")
    k(f"v_cndmask_b32 {v(vMk)}, {v(vMk)}, 0, vcc")

    vC0, vS0, vNS0, vC1, vS1, vNC1 = (V(4) for _ in range(6))
    k(f"s_add_u32 {s(sE1)}, {s(sE1)}, {s(sW)}")
    k(f"s_cmp_eq_u32 {s(sE1)}, 0")
    k(f"s_cselect_b32 {s(sT)}, 16, {s(sE1)}")
    k(f"s_add_u32 {s(sT)}, {s(sT)}, 992")
    for T in range(2):
        if T == 0:
            k(f"v_lshl_add_u32 {v(f)}, {v(vN)}, 5, {s(sE1)}")
            k(f"v_mov_b32 {v(a)}, 512")
            k(f"v_cmp_eq_u32 vcc, 0, {v(f)}")
            k(f"v_cndmask_b32 {v(f)}, {v(f)}, {v(a)}, vcc")
        else:
            k(f"v_lshlrev_b32 {v(f)}, 5, {v(vN)}")
            k(f"v_sub_u32 {v(f)}, {s(sT)}, {v(f)}")
        k(f"v_cvt_f32_u32 {v(f)}, {v(f)}")
        k(f"v_mul_f32 {v(f)}, {v(vInv)}, {v(f)}")
        k(f"v_mul_f32 {v(arg)}, {v(f)}, {v(vG4f)}")
        k(f"v_fmamk_f32 {v(arg + 4)}, {v(f)}, {fl(16.0)}, {v(arg)}")
        for j in range(1, 4):
            k(f"v_add_f32 {v(arg + j)}, {v(arg + j - 1)}, {v(f)}")
            k(f"v_add_f32 {v(arg + 4 + j)}, {v(arg + 3 + j)}, {v(f)}")
        trig_pack(vC1 if T else vC0, vS1 if T else vS0, arg)
        for j in range(4):
            if T == 0:
                k(f"v_xor_b32 {v(vNS0 + j)}, 0x80008000, {v(vS0 + j)}")
            else:
                k(f"v_xor_b32 {v(vNC1 + j)}, 0x80008000, {v(vC1 + j)}")
        wdma(sched.get(f"pro{T + 1}", 0))
    V.free(arg, 8)

    vBf = V(8)
    dc = V()
    k(f"v_lshrrev_b32 {v(f)}, 1, {v(vN)}")
    k(f"v_and_b32 {v(ph)}, 1, {v(vN)}")
    k(f"v_cvt_f32_u32 {v(f)}, {v(f)}")
    k(f"v_cvt_f32_u32 {v(a)}, {v(ph)}")
    k(f"v_cmp_gt_u32 vcc, 32, {v(vL)}")
    k(f"v_mov_b32 {v(dc)}, {fl(-0.25)}")
    k(f"v_mul_f32 {v(f)}, {fl(0.125)}, {v(f)}")
    k(f"s_cmp_eq_u32 {s(sQ)}, 0")
    k("s_cbranch_scc1 BFQ0")
    k(f"v_mul_f32 {v(ph)}, {fl(0.25)}, {v(a)}")
    k(f"v_cndmask_b32 {v(dc)}, -{v(dc)}, {v(dc)}, vcc")
    k("s_branch BFGO")
    k("BFQ0:")
    s64 = S(2)
    k(f"v_lshrrev_b32 {v(a)}, 5, {v(vL)}")
    k(f"v_cmp_eq_u32 {s(s64, 2)}, {v(a)}, {v(ph)}")
    k(f"v_mul_f32 {v(ph)}, {fl(7.5)}, {v(f)}")
    k(f"v_cndmask_b32 {v(ph)}, {v(ph)}, 0, vcc")
    k(f"v_cndmask_b32 {v(f)}, -{v(f)}, {v(f)}, vcc")
    k(f"v_cndmask_b32 {v(ph)}, -{v(dc)}, {v(ph)}, {s(s64, 2)}")
    k(f"v_cndmask_b32 {v(f)}, 0, {v(f)}, {s(s64, 2)}")
    k(f"v_cndmask_b32 {v(dc)}, 0, {v(dc)}, {s(s64, 2)}")
    k("BFGO:")
    k(f"v_cvt_f32_u32 {v(a)}, {v(vG1)}")
    k(f"v_mul_f32 {v(a)}, 4.0, {v(a)}")
    k(f"v_fma_f32 {v(vBf)}, {v(f)}, {v(a)}, {v(ph)}")
    for j in range(1, 4):
        k(f"v_add_f32 {v(vBf + j)}, {v(vBf + j - 1)}, {v(f)}")
    for j in range(4):
        k(f"v_add_f32 {v(vBf + 4 + j)}, {v(vBf + j)}, {v(dc)}")
    for j in range(8):
        k(f"v_cos_f32 {v(vBf + j)}, {v(vBf + j)}")
    V.free(dc), V.free(vG4f)

    vSo, vSt, vA0, vA1, vTd, vTp, vM1, vM2, vCr, vT2a, vT2b, vT2r, vUs, vRrd = (V() for _ in range(14))
    k(f"v_lshl_add_u32 {v(vSo)}, {v(vL)}, 4, {s(sLo)}")
    k(f"v_xor_b32 {v(vSt)}, 16384, {v(vSo)}")
    k(f"s_lshl_b32 {s(sT)}, {s(sW)}, 11")
    k(f"v_lshl_add_u32 {v(a)}, {v(vG)}, 9, {s(sT)}")
    k(f"v_lshl_add_u32 {v(a)}, {v(vR)}, 6, {v(a)}")
    k(f"v_lshl_add_u32 {v(a)}, {v(vG1)}, 5, {v(a)}")
    k(f"v_lshl_add_u32 {v(vA0)}, {v(vC)}, 3, {v(a)}")
    k(f"v_xor_b32 {v(vA1)}, 32, {v(vA0)}")
    k(f"s_cmp_lt_u32 {s(sW)}, 4")
    k(f"s_cselect_b32 {s(sT)}, 0, 3")
    k(f"s_lshl_b32 {s(sT2)}, {s(sW)}, 6")
    k(f"s_add_u32 {s(sT2)}, {s(sT2)}, {T1}")
    k(f"v_mul_u32_u24 {v(f)}, 1040, {v(vN)}")
    k(f"v_xor_b32 {v(a)}, {s(sT)}, {v(vG)}")
    k(f"v_add_u32 {v(f)}, {s(sT2)}, {v(f)}")
    k(f"v_lshl_add_u32 {v(vTd)}, {v(a)}, 4, {v(f)}")
    k(f"v_xor_b32 {v(a)}, 2, {v(a)}")
    k(f"v_lshl_add_u32 {v(vTp)}, {v(a)}, 4, {v(f)}")
    k(f"s_mul_i32 {s(sT)}, {s(sW)}, 2080")
    k(f"s_add_u32 {s(sT)}, {s(sT)}, {T1}")
    k(f"v_sub_u32 {v(a)}, 4, {v(vR)}")
    k(f"v_and_b32 {v(a)}, 3, {v(a)}")
    k(f"v_xor_b32 {v(a)}, {v(a)}, {v(vG)}")
    k(f"v_lshl_add_u32 {v(f)}, {v(vN)}, 6, {s(sT)}")
    k(f"v_lshl_add_u32 {v(vCr)}, {v(a)}, 4, {v(f)}")
    k(f"s_lshl_b32 {s(sT)}, {s(sW)}, 2")
    k(f"s_add_u32 {s(sT)}, {s(sT)}, {MISC}")
    k(f"v_mov_b32 {v(vM1)}, {s(sT)}")
    k(f"s_lshl_b32 {s(sT2)}, {s(sHF)}, 5")
    k(f"v_add_u32 {v(vM2)}, {s(sT2)}, {v(vM1)}")
    k(f"v_lshlrev_b32 {v(vRrd)}, 4, {v(vG)}")
    k(f"v_lshlrev_b32 {v(a)}, 8, {v(vG)}")
    k(f"v_lshl_add_u32 {v(a)}, {v(vN)}, 3, {v(a)}")
    k(f"s_mul_i32 {s(sT)}, {s(sW)}, 1088")
    k(f"s_add_u32 {s(sT)}, {s(sT)}, {T2}")
    k(f"v_add_u32 {v(vT2a)}, {s(sT)}, {v(a)}")
    k(f"s_sub_u32 {s(sT)}, 8, {s(sW)}")
    k(f"s_and_b32 {s(sT)}, {s(sT)}, 7")
    k(f"s_mul_i32 {s(sT)}, {s(sT)}, 1088")
    k(f"s_add_u32 {s(sT)}, {s(sT)}, {T2 + 4}")
    k(f"v_add_u32 {v(vT2b)}, {s(sT)}, {v(a)}")
    k(f"s_lshl_b32 {s(sT)}, {s(sW)}, 7")
    k(f"s_add_u32 {s(sT)}, {s(sT)}, {T2}")
    k(f"v_mul_u32_u24 {v(a)}, 1088, {v(vR)}")
    k(f"v_lshl_add_u32 {v(f)}, {v(vG)}, 2, {v(vC)}")
    k(f"v_add_u32 {v(a)}, {s(sT)}, {v(a)}")
    k(f"v_lshl_add_u32 {v(vT2r)}, {v(f)}, 3, {v(a)}")
    sUs = S()
    k(f"v_lshrrev_b32 {v(a)}, 2, {v(vL)}")
    k(f"v_lshlrev_b32 {v(a)}, 14, {v(a)}")
    k(f"v_lshl_add_u32 {v(vUs)}, {v(vC)}, 4, {v(a)}")
    k(f"s_lshl_b32 {s(sUs)}, {s(sW)}, 18")
    k(f"s_lshl_b32 {s(sT)}, {s(sQ)}, 7")
    k(f"s_add_u32 {s(sUs)}, {s(sUs)}, {s(sT)}")
    k(f"s_lshl_b32 {s(sT)}, {s(sHF)}, 6")
    k(f"s_add_u32 {s(sUs)}, {s(sUs)}, {s(sT)}")
    V.free(f), V.free(ph), V.free(a)
    s1, s2, s3, sw, o1, o2 = (V() for _ in range(6))
    for x in (s1, s2, s3, sw, o1, o2):
        k(f"v_mov_b32 {v(x)}, 0")
    stamp(lg, "consts")

    xo, xt = V(8), V(8)
    Af = [[V(4), V(4)], [V(4), V(4)]]
    vm.wait("own")
    lg.issue(f"ds_read_b128 {v(xo, 4)}, {v(vSo)}")
    lg.issue(f"ds_read_b128 {v(xo + 4, 4)}, {v(vSo)} offset:1024", "xo")
    vm.wait("oth")
    stamp(lg, "x_in")
    lg.issue(f"ds_read_b128 {v(xt, 4)}, {v(vSt)}")
    lg.issue(f"ds_read_b128 {v(xt + 4, 4)}, {v(vSt)} offset:1024", "xt")
    for row in range(2):
        for half in range(2):
            for h in range(2):
                lg.issue(f"ds_read_b64_tr_b16 {v(Af[row][half] + 2 * h, 2)}, {v(vA1 if half else vA0)} offset:{row * 16384 + h * 256}", f"af{row}{half}")
    for j in range(8):
        k(f"v_dot2c_f32_bf16 {v(sw)}, 0x3f803f80, {v(vWr + j)}")
    lg.wait("xo")
    for j in range(8):
        k(f"v_dot2c_f32_bf16 {v(s1)}, 0x3f803f80, {v(xo + j)}")
        k(f"v_dot2c_f32_bf16 {v(s2)}, {v(xo + j)}, {v(xo + j)}")
        k(f"v_dot2c_f32_bf16 {v(s3)}, {v(xo + j)}, {v(vWr + j)}")
    k(f"v_permlane32_swap_b32 {v(s1)}, {v(s2)}")
    k(f"v_permlane32_swap_b32 {v(s3)}, {v(sw)}")
    k(f"v_add_f32 {v(s1)}, {v(s1)}, {v(s2)}")
    k(f"v_add_f32 {v(s3)}, {v(s3)}, {v(sw)}")
    k(f"v_permlane16_swap_b32 {v(s1)}, {v(s3)}")
    k(f"v_add_f32 {v(s1)}, {v(s1)}, {v(s3)}")
    for sh in (8, 4, 2, 1):
        k(f"v_add_f32_dpp {v(s1)}, {v(s1)}, {v(s1)} row_ror:{sh} row_mask:0xf bank_mask:0xf")
    q1, q2, q3, q4 = (S() for _ in range(4))
    k(f"v_readlane_b32 {s(q1)}, {v(s1)}, 0")
    k(f"v_readlane_b32 {s(q2)}, {v(s1)}, 32")
    k(f"v_readlane_b32 {s(q3)}, {v(s1)}, 16")
    k(f"v_readlane_b32 {s(q4)}, {v(s1)}, 48")
    mo, ro = V(), V()
    k(f"v_mul_f32 {v(mo)}, {s(q1)}, {v(vInv)}")
    k(f"v_mul_f32 {v(s2)}, {s(q2)}, {v(vInv)}")
    k(f"v_mov_b32 {v(s3)}, {s(q3)}")
    k(f"v_fma_f32 {v(s2)}, -{v(mo)}, {v(mo)}, {v(s2)}")
    k(f"v_fma_f32 {v(s3)}, -{v(mo)}, {s(q4)}, {v(s3)}")
    k(f"v_max_f32 {v(s2)}, 0, {v(s2)}")
    k(f"v_add_f32 {v(s2)}, {fl(1e-5)}, {v(s2)}")
    k(f"v_rsq_f32 {v(ro)}, {v(s2)}")
    k(f"v_mul_f32 {v(s3)}, {v(s3)}, {v(ro)}")
    k(f"v_ashrrev_i32 {v(s2)}, 31, {v(s3)}")
    k(f"v_or_b32 {v(s2)}, 0x80000000, {v(s2)}")
    k(f"v_xor_b32 {v(s2)}, {v(s3)}, {v(s2)}")
    k(f"v_and_b32 {v(s2)}, 0xfffff800, {v(s2)}")
    k(f"v_or_b32 {v(s2)}, {s(sOwn)}, {v(s2)}")
    k("s_mov_b64 exec, 1")
    lg.issue(f"ds_write2_b32 {v(vM1)}, {v(s2)}, {v(mo)} offset0:16 offset1:40")
    lg.issue(f"ds_write_b32 {v(vM2)}, {v(ro)}")
    k("s_mov_b64 exec, -1")
    if P["early_bar"]:
        lg.all()
        k("s_barrier")
        stamp(lg, "bar1")
        wdma(sched.get("bar1", 0))
    lg.wait("xt")
    for j in range(8):
        k(f"v_dot2c_f32_bf16 {v(o1)}, 0x3f803f80, {v(xt + j)}")
        k(f"v_dot2c_f32_bf16 {v(o2)}, {v(xt + j)}, {v(xt + j)}")
    k(f"v_permlane32_swap_b32 {v(o1)}, {v(o2)}")
    Ci = [V(4), V(4)]
    for j in range(4):
        k(f"v_mul_f32 {v(Ci[0] + j)}, {v(vMk)}, {v(mo)}")
    k(f"v_add_f32 {v(o1)}, {v(o1)}, {v(o2)}")
    k(f"v_mov_b32 {v(o2)}, {v(o1)}")
    Da = [[V(4), V(4)], [V(4), V(4)]]
    lg.wait("af01")
    k(f"v_mfma_f32_16x16x32_bf16 {v(Da[0][0], 4)}, {v(Af[0][0], 4)}, {v(vKA, 4)}, {v(Ci[0], 4)}")
    k(f"v_permlane16_swap_b32 {v(o1)}, {v(o2)}")
    k(f"v_mfma_f32_16x16x32_bf16 {v(Da[0][1], 4)}, {v(Af[0][1], 4)}, {v(vKA, 4)}, {v(Ci[0], 4)}")
    k(f"v_add_f32 {v(o1)}, {v(o1)}, {v(o2)}")
    for sh in (8, 4, 2, 1):
        k(f"v_add_f32_dpp {v(o1)}, {v(o1)}, {v(o1)} row_ror:{sh} row_mask:0xf bank_mask:0xf")
    k(f"v_readlane_b32 {s(q1)}, {v(o1)}, 0")
    k(f"v_readlane_b32 {s(q2)}, {v(o1)}, 32")
    pk = V(4)
    for half in range(2):
        for j in range(2):
            k(f"v_cvt_pk_bf16_f32 {v(pk + 2 * half + j)}, {v(Da[0][half] + 2 * j)}, {v(Da[0][half] + 2 * j + 1)}")
    k(f"v_mul_f32 {v(o1)}, {s(q1)}, {v(vInv)}")
    k(f"v_mul_f32 {v(o2)}, {s(q2)}, {v(vInv)}")
    lg.issue(f"ds_write_b128 {v(vTd)}, {v(pk, 4)}")
    for j in range(4):
        k(f"v_mul_f32 {v(Ci[1] + j)}, {v(vMk)}, {v(o1)}")
    k(f"v_fma_f32 {v(o2)}, -{v(o1)}, {v(o1)}, {v(o2)}")
    lg.wait("af11")
    k(f"v_mfma_f32_16x16x32_bf16 {v(Da[1][0], 4)}, {v(Af[1][0], 4)}, {v(vKA, 4)}, {v(Ci[1], 4)}")
    k(f"v_mfma_f32_16x16x32_bf16 {v(Da[1][1], 4)}, {v(Af[1][1], 4)}, {v(vKA, 4)}, {v(Ci[1], 4)}")
    k(f"v_max_f32 {v(o2)}, 0, {v(o2)}")
    k(f"v_add_f32 {v(o2)}, {fl(1e-5)}, {v(o2)}")
    k(f"v_rsq_f32 {v(o2)}, {v(o2)}")
    k(f"v_xor_b32 {v(vM2)}, 32, {v(vM2)}")
    k("s_mov_b64 exec, 1")
    lg.issue(f"ds_write_b32 {v(vM2)}, {v(o2)}")
    k("s_mov_b64 exec, -1")
    pk2 = V(4)
    for half in range(2):
        for j in range(2):
            k(f"v_cvt_pk_bf16_f32 {v(pk2 + 2 * half + j)}, {v(Da[1][half] + 2 * j)}, {v(Da[1][half] + 2 * j + 1)}")
    lg.issue(f"ds_write_b128 {v(vTp)}, {v(pk2, 4)} offset:512")
    lg.all()
    k("s_barrier")
    stamp(lg, "bar1b")
    for x in (s1, s2, s3, sw, o1, o2, mo, ro, vMk, vSo, vSt, vA0, vA1, vTd, vTp, vM1, vM2):
        V.free(x)
    for x in (xo, xt, vWr):
        V.free(x, 8)
    for x in (Af[0][0], Af[0][1], Af[1][0], Af[1][1], Da[0][0], Da[0][1], Da[1][0], Da[1][1], Ci[0], Ci[1], pk, pk2, vKA):
        V.free(x, 4)

    Ar, Ai, Rs = V(4), V(4), V(4)
    lg.issue(f"ds_read_b128 {v(Ar, 4)}, {v(vCr)}", "ar")
    lg.issue(f"ds_read_b128 {v(Ai, 4)}, {v(vCr)} offset:1040", "ai")
    lg.issue(f"ds_read_b128 {v(Rs, 4)}, {v(vRrd)} offset:{M_RS}", "rs")
    wdma(sched.get("bar1b", 0))
    Xr0, Xi0, Xr1, Xi1 = (V(4) for _ in range(4))

    def mf(d, a_, b_, c_=None):
        k(f"v_mfma_f32_16x16x32_bf16 {v(d, 4)}, {v(a_, 4)}, {v(b_, 4)}, {v(c_, 4) if c_ is not None else 0}")

    lg.wait("ai")
    k(f"s_cmp_eq_u32 {s(sE1)}, 0")
    k("s_cbranch_scc1 SPECC")
    mf(Xr0, Ar, vC0), mf(Xi0, Ar, vNS0), mf(Xr1, Ar, vC1), mf(Xi1, Ar, vS1)
    mf(Xr0, Ai, vS0, Xr0), mf(Xi0, Ai, vC0, Xi0), mf(Xr1, Ai, vS1, Xr1), mf(Xi1, Ai, vNC1, Xi1)
    k("SPECD:")
    lg.wait("rs")
    for j in range(8):
        k(f"v_mul_f32 {v(vBf + j)}, {v(vBf + j)}, {v(Rs + (j & 3))}")
    Bq, B0, B1 = V(4), V(4), V(4)
    for j in range(4):
        k(f"v_cvt_pk_bf16_f32 {v(Bq + j)}, {v(vBf + 2 * j)}, {v(vBf + 2 * j + 1)}")
    for dst, xr, xi in ((B0, Xr0, Xi0), (B1, Xr1, Xi1)):
        for j in range(2):
            k(f"v_cvt_pk_bf16_f32 {v(dst + j)}, {v(xr + 2 * j)}, {v(xr + 2 * j + 1)}")
        for j in range(2):
            k(f"v_cvt_pk_bf16_f32 {v(dst + 2 + j)}, {v(xi + 2 * j)}, {v(xi + 2 * j + 1)}")
        mf(Ar if dst == B0 else Ai, Bq, dst)
    for dst, src, adr in ((B0, Ar, vT2a), (B1, Ai, vT2b)):
        k(f"v_cvt_pk_bf16_f32 {v(dst)}, {v(src)}, {v(src + 1)}")
        k(f"v_cvt_pk_bf16_f32 {v(dst + 1)}, {v(src + 2)}, {v(src + 3)}")
        lg.issue(f"ds_write2_b32 {v(adr)}, {v(dst)}, {v(dst + 1)} offset1:32")
    lg.all()
    k("s_barrier")
    lg.issue(f"ds_read_b64_tr_b16 {v(Bq, 2)}, {v(vT2r)}")
    lg.issue(f"ds_read_b64_tr_b16 {v(Bq + 2, 2)}, {v(vT2r)} offset:4352")
    sBlk, sHalf, sUt, sUe = (S() for _ in range(4))
    vT, vTm, vOd, vOm, vSd, vSm = (V() for _ in range(6))
    a, b = V(), V()
    k(f"s_and_b32 {s(sBlk)}, {s(sU)}, 15")
    k(f"s_lshr_b32 {s(sHalf)}, {s(sU)}, 4")
    k(f"s_lshl3_add_u32 {s(sT)}, {s(sHalf)}, {s(sW)}")
    k(f"s_lshl_b32 {s(sT)}, {s(sT)}, 7")
    k(f"s_add_u32 {s(sT)}, {s(sT)}, {s(sX8)}")
    k(f"v_lshl_add_u32 {v(vT)}, {v(vN)}, 3, {s(sT)}")
    k(f"v_sub_u32 {v(vTm)}, 2048, {v(vT)}")
    k(f"v_and_b32 {v(vTm)}, 2047, {v(vTm)}")
    lg.all()
    vm.issue(f"buffer_store_dwordx4 {v(Bq, 4)}, {v(vUs)}, {WS}, {s(sUs)} offen sc1")
    stamp(lg, "ust")
    k(f"s_lshl_b32 {s(sT)}, {s(sBlk)}, 6")
    k(f"v_lshl_add_u32 {v(a)}, {v(vG)}, 4, {s(sT)}")
    k(f"v_lshl_add_u32 {v(vOd)}, {v(vT)}, 11, {v(a)}")
    k(f"v_sub_u32 {v(a)}, 2032, {v(a)}")
    k(f"v_lshl_add_u32 {v(vOm)}, {v(vTm)}, 11, {v(a)}")
    xd, xm = V(4), V(4)
    vm.issue(f"buffer_load_dwordx4 {v(xd, 4)}, {v(vOd)}, {X}, 0 offen")
    vm.issue(f"buffer_load_dwordx4 {v(xm, 4)}, {v(vOm)}, {X}, 0 offen", "res")
    wdma(sched.get("ust", 0))
    for x in (q1, q2, q3, q4, sOwn, sOth, sLo, sE1, sUs):
        S.free(x)
    S.free(s64, 2)
    for x in (Ar, Ai, Rs, Xr0, Xi0, Xr1, Xi1, B0, B1, vC0, vS0, vNS0, vC1, vS1, vNC1):
        V.free(x, 4)
    V.free(vBf, 8)
    for x in (vCr, vT2a, vT2b, vT2r, vRrd):
        V.free(x)
    for dst, src in ((vSd, vT), (vSm, vTm)):
        k(f"v_and_b32 {v(a)}, 7, {v(src)}")
        k(f"v_and_b32 {v(b)}, 0x7f8, {v(src)}")
        k(f"v_lshl_add_u32 {v(dst)}, {v(a)}, 11, {v(b)}")

    K2 = V(32)
    f, f4, f16 = V(), V(), V()
    arg = V(4)
    tc = V(4)
    k(f"v_cvt_f32_u32 {v(f)}, {v(vT)}")
    k(f"v_lshrrev_b32 {v(a)}, 5, {v(vL)}")
    k(f"v_lshlrev_b32 {v(b)}, 1, {v(vG1)}")
    k(f"v_lshl_add_u32 {v(a)}, {v(a)}, 3, {v(b)}")
    k(f"v_mul_f32 {v(f)}, {fl(1 / 2048)}, {v(f)}")
    k(f"v_cvt_f32_u32 {v(a)}, {v(a)}")
    k(f"v_mul_f32 {v(f16)}, {fl(16.0)}, {v(f)}")
    k(f"v_mul_f32 {v(arg)}, {v(f)}, {v(a)}")
    k(f"v_add_f32 {v(arg + 1)}, {v(arg)}, {v(f)}")
    k(f"v_fma_f32 {v(arg + 2)}, {v(f)}, 4.0, {v(arg)}")
    k(f"v_fma_f32 {v(arg + 3)}, {v(f)}, 4.0, {v(arg + 1)}")
    c2 = sched.get("c2", 0)
    c2at = [round((i + 1) * 8 / (c2 + 1)) for i in range(c2)]
    for ks in range(8):
        for j in range(4):
            k(f"v_cos_f32 {v(tc + j)}, {v(arg + j)}")
            k(f"v_sin_f32 {v(K2 + 4 * ks + j)}, {v(arg + j)}")
        for j in range(4):
            if ks < 7:
                k(f"v_add_f32 {v(arg + j)}, {v(arg + j)}, {v(f16)}")
            k(f"v_cvt_pk_bf16_f32 {v(K2 + 4 * ks + j)}, {v(tc + j)}, {v(K2 + 4 * ks + j)}")
        wdma(c2at.count(ks + 1))
    k(f"v_and_b32 {v(a)}, 1, {v(vN)}")
    k(f"v_lshlrev_b32 {v(a)}, 31, {v(a)}")
    k(f"v_or_b32 {v(a)}, 0x3f803f80, {v(a)}")
    k(f"v_cmp_gt_u32 vcc, 16, {v(vL)}")
    k(f"v_cndmask_b32 {v(K2)}, {v(K2)}, {v(a)}, vcc")
    for x in (f, f4, f16):
        V.free(x)
    V.free(arg, 4), V.free(tc, 4), V.free(Bq, 4), V.free(vUs)

    vUo, vUe, vIa, vIb, vIe, vIr, vSa, vSb = (V() for _ in range(8))
    k(f"s_lshl_b32 {s(sT)}, {s(sX8)}, 18")
    k(f"s_lshl_b32 {s(sT2)}, {s(sW)}, 11")
    k(f"s_add_u32 {s(sT)}, {s(sT)}, {s(sT2)}")
    k(f"s_lshl_b32 {s(sUt)}, {s(sBlk)}, 14")
    k(f"s_add_u32 {s(sUt)}, {s(sUt)}, {s(sT)}")
    k(f"s_add_u32 {s(sUe)}, {s(sBlk)}, 1")
    k(f"s_and_b32 {s(sUe)}, {s(sUe)}, 15")
    k(f"s_lshl_b32 {s(sUe)}, {s(sUe)}, 14")
    k(f"s_add_u32 {s(sUe)}, {s(sUe)}, {s(sT)}")
    ql, l1, tt = V(), V(), V()
    k(f"v_lshrrev_b32 {v(ql)}, 2, {v(vL)}")
    k(f"v_and_b32 {v(l1)}, 1, {v(vL)}")
    k(f"v_bfe_u32 {v(tt)}, {v(vL)}, 1, 1")
    k(f"v_lshlrev_b32 {v(a)}, 7, {v(ql)}")
    k(f"v_lshl_add_u32 {v(vUo)}, {v(vC)}, 4, {v(a)}")
    k(f"v_lshl_add_u32 {v(vUe)}, {v(l1)}, 4, {v(a)}")
    k(f"s_mul_i32 {s(sT)}, {s(sW)}, {32 * 96}")
    k(f"v_lshl_add_u32 {v(a)}, {v(ql)}, 1, {v(l1)}")
    k(f"v_mul_u32_u24 {v(a)}, 96, {v(a)}")
    k(f"v_add_u32 {v(vIe)}, {s(sT)}, {v(a)}")
    k(f"v_mad_u32_u24 {v(vIa)}, {v(tt)}, 24, {v(vIe)}")
    k(f"v_lshl_add_u32 {v(vIb)}, {v(tt)}, 3, {v(vIe)}")
    k(f"v_lshrrev_b32 {v(a)}, 5, {v(vL)}")
    k(f"v_lshl_add_u32 {v(b)}, {v(vG1)}, 2, {v(vR)}")
    k(f"v_lshl_add_u32 {v(a)}, {v(a)}, 4, {v(b)}")
    k(f"v_mul_u32_u24 {v(a)}, 96, {v(a)}")
    k(f"v_lshl_add_u32 {v(vIr)}, {v(vC)}, 3, {v(a)}")
    k(f"s_cmp_eq_u32 {s(sBlk)}, 0")
    k(f"s_cselect_b32 {s(sT)}, 0x0908, 0")
    k(f"s_xor_b32 {s(sT)}, {s(sT)}, 0x07060504")
    k(f"v_cmp_eq_u32 vcc, 1, {v(tt)}")
    k(f"v_mov_b32 {v(a)}, 0x07060100")
    k(f"v_mov_b32 {v(vSb)}, 0x07060504")
    k(f"v_mov_b32 {v(vSa)}, {s(sT)}")
    k(f"v_cndmask_b32 {v(vSb)}, {v(vSb)}, {v(a)}, vcc")
    k(f"v_cndmask_b32 {v(vSa)}, {v(vSa)}, {v(a)}, vcc")
    V.free(ql), V.free(l1), V.free(tt)
    vGU, vXw, vXr, vPo, vSel, vG16 = (V() for _ in range(6))
    vDn = V(8)
    xb = V(16)
    k(f"v_lshrrev_b32 {v(a)}, 5, {v(vL)}")
    k(f"v_lshl_add_u32 {v(a)}, {v(a)}, 9, {s(sWm)}")
    k(f"v_lshl_add_u32 {v(a)}, {v(vG1)}, 7, {v(a)}")
    k(f"v_lshl_add_u32 {v(a)}, {v(vR)}, 5, {v(a)}")
    k(f"v_lshl_add_u32 {v(vGU)}, {v(vC)}, 3, {v(a)}")
    k(f"s_add_u32 {s(sT)}, {s(sWm)}, 65536")
    k(f"v_lshl_add_u32 {v(a)}, {v(vG)}, 10, {s(sT)}")
    k(f"v_mad_u32_u24 {v(a)}, {v(vR)}, 64, {v(a)}")
    k(f"v_lshl_add_u32 {v(a)}, {v(vR)}, 8, {v(a)}")
    k(f"v_lshl_add_u32 {v(a)}, {v(vC)}, 4, {v(a)}")
    k(f"v_lshl_add_u32 {v(vDn)}, {v(vG1)}, 3, {v(a)}")
    for z in range(1, 8):
        k(f"v_xor_b32 {v(vDn + z)}, {(z >> 1) * 64 + (z & 1) * 8}, {v(vDn)}")
    k(f"v_lshlrev_b32 {v(a)}, 9, {v(vG)}")
    k(f"v_lshl_add_u32 {v(vXr)}, {v(vN)}, 4, {v(a)}")
    k(f"s_lshl_b32 {s(sT)}, {s(sW)}, 5")
    k(f"v_add_u32 {v(vXw)}, {s(sT)}, {v(vXr)}")
    k(f"v_lshlrev_b32 {v(vG16)}, 4, {v(vG)}")
    k(f"v_and_b32 {v(b)}, 1, {v(vN)}")
    k(f"v_lshl_add_u32 {v(a)}, {v(b)}, 5, {v(vR)}")
    k(f"v_mul_u32_u24 {v(a)}, 14336, {v(a)}")
    k(f"v_add_u32 {v(vPo)}, {v(a)}, {v(vG16)}")
    k(f"v_lshlrev_b32 {v(vSel)}, 2, {v(b)}")
    for j in range(16):
        k(f"v_mov_b32 {v(xb + j)}, 0x3f803f80")
    sZ = [S(2) for _ in range(8)]
    for z in range(8):
        m = 0
        for l in range(32):
            if (((l & 15) >> 1) ^ (l >> 4)) == z:
                m |= 1 << l
        k(f"s_mov_b32 {s(sZ[z])}, {hex(m)}")
        k(f"s_mov_b32 {s(sZ[z] + 1)}, {hex(m)}")
    S.free(sBlk), S.free(sHalf)
    sN2, sPo, sXo, sSt, sCnt = S(2), S(), S(), S(), S()
    k(f"s_mov_b32 {s(sN2)}, 0x00030003")
    k(f"s_mov_b32 {s(sN2 + 1)}, 0x00030003")
    k(f"s_mul_i32 {s(sPo)}, {s(sW)}, {4 * 14336}")
    k(f"s_lshl_b32 {s(sT)}, {s(sSl)}, 6")
    k(f"s_add_u32 {s(sPo)}, {s(sPo)}, {s(sT)}")
    k(f"s_add_u32 {s(sPo)}, {s(sPo)}, {W_PART}")
    k(f"s_lshl_b32 {s(sXo)}, {s(sW)}, 8")
    k(f"s_mov_b32 {s(sSt)}, {W_STATS}")
    k(f"s_mov_b32 {s(sCnt)}, 0")
    for x in (sSl, sRP, sQ, sHF, sU, sX8):
        S.free(x)
    vd, vmr = V(8), V(8)
    vm.wait("res")
    for dst, src in ((vd, xd), (vmr, xm)):
        for j in range(4):
            k(f"v_lshlrev_b32 {v(dst + 2 * j)}, 16, {v(src + j)}")
            k(f"v_and_b32 {v(dst + 2 * j + 1)}, 0xffff0000, {v(src + j)}")
    V.free(xd, 4), V.free(xm, 4)
    stamp(lg, "pre3")
    lg.all()
    k("s_barrier")
    stamp(lg, "bar3")

    UA, UB, UE, Sd, Sm, Ss, rows, rowl = V(4), V(4), V(), V(2), V(2), V(2), V(2), V()

    def tile_loads(issue):
        issue(f"buffer_load_dwordx4 {v(UA, 4)}, {v(vUo)}, {WS}, {s(sUt)} offen sc1")
        issue(f"buffer_load_dwordx4 {v(UB, 4)}, {v(vUo)}, {WS}, {s(sUt)} offen offset:64 sc1")
        issue(f"buffer_load_dword {v(UE)}, {v(vUe)}, {WS}, {s(sUe)} offen sc1")
        issue(f"buffer_load_dwordx2 {v(Sd, 2)}, {v(vSd)}, {WS}, {s(sSt)} offen sc1")
        issue(f"buffer_load_dwordx2 {v(Sm, 2)}, {v(vSm)}, {WS}, {s(sSt)} offen sc1")

    lg.issue(f"ds_read_b32 {v(rowl)}, {v(vSel)} offset:{M_SEL}", "rowl")
    k(f"v_mov_b32 {v(a)}, 0")
    lg.issue(f"ds_read_b64 {v(rows, 2)}, {v(a)} offset:{M_SEL}", "rows")
    tile_loads(vm.issue)
    lg.wait("rowl")
    k(f"v_and_b32 {v(a)}, 7, {v(rowl)}")
    k(f"v_and_b32 {v(b)}, 0x7f8, {v(rowl)}")
    k(f"v_lshl_add_u32 {v(vSel)}, {v(a)}, 11, {v(b)}")
    k(f"v_lshl_add_u32 {v(rowl)}, {v(rowl)}, 11, {v(vG16)}")
    vm.issue(f"buffer_load_dwordx2 {v(Ss, 2)}, {v(vSel)}, {WS}, {s(sSt)} offen sc1", "tile")
    k(f"s_mov_b64 exec, {s(sN2, 2)}")
    for ks in range(4):
        vm.issue(f"buffer_load_dwordx4 {v(xb + 4 * ks, 4)}, {v(rowl)}, {X}, {s(sXo)} offen offset:{ks * 64}", "xb")
    k("s_mov_b64 exec, -1")
    wdma(sched.get("sel", 0))
    lg.wait("rows")
    sd0, sm0, sm1 = (S(2) for _ in range(3))
    k(f"v_cmp_eq_u32 {s(sd0, 2)}, {v(vT)}, {v(rows)}")
    k(f"v_cmp_eq_u32 vcc, {v(vT)}, {v(rows + 1)}")
    k(f"v_cmp_eq_u32 {s(sm0, 2)}, {v(vTm)}, {v(rows)}")
    k(f"v_cmp_eq_u32 {s(sm1, 2)}, {v(vTm)}, {v(rows + 1)}")
    k(f"v_bfrev_b32 {v(a)}, 1")
    vFd, vFm = vT, vTm
    k(f"v_lshlrev_b32 {v(b)}, 5, {v(vG)}")
    k(f"v_cndmask_b32 {v(vFd)}, 0, 64, vcc")
    k(f"v_cndmask_b32 {v(vFm)}, 0, 64, {s(sm1, 2)}")
    k(f"s_or_b64 {s(sd0, 2)}, {s(sd0, 2)}, vcc")
    k(f"s_or_b64 {s(sm0, 2)}, {s(sm0, 2)}, {s(sm1, 2)}")
    k(f"v_lshl_add_u32 {v(vFd)}, {v(vFd)}, 1, {v(b)}")
    k(f"v_sub_u32 {v(b)}, 96, {v(b)}")
    k(f"v_lshl_add_u32 {v(vFm)}, {v(vFm)}, 1, {v(b)}")
    k(f"v_cndmask_b32 {v(vOd)}, {v(vOd)}, {v(a)}, {s(sd0, 2)}")
    k(f"v_cndmask_b32 {v(vOm)}, {v(vOm)}, {v(a)}, {s(sm0, 2)}")
    S.free(sm1, 2)
    V.free(rows, 2)
    vm.wait("tile")
    k("UCHK:")
    k(f"v_max3_u32 {v(a)}, {v(UA)}, {v(UA + 1)}, {v(UA + 2)}")
    k(f"v_max3_u32 {v(b)}, {v(UB)}, {v(UB + 1)}, {v(UB + 2)}")
    k(f"v_max3_u32 {v(a)}, {v(a)}, {v(UA + 3)}, {v(UB + 3)}")
    k(f"v_max3_u32 {v(b)}, {v(b)}, {v(UE)}, {v(Sd)}")
    k(f"v_max3_u32 {v(a)}, {v(a)}, {v(Sd + 1)}, {v(Sm)}")
    k(f"v_max3_u32 {v(b)}, {v(b)}, {v(Sm + 1)}, {v(Ss)}")
    k(f"v_max3_u32 {v(a)}, {v(a)}, {v(b)}, {v(Ss + 1)}")
    k(f"v_cmp_eq_u32 vcc, -1, {v(a)}")
    k("s_cbranch_vccnz URETRY")
    k("UOK:")
    stamp(lg, "tile")
    k(f"v_perm_b32 {v(a)}, {v(UA)}, {v(UB)}, {v(vSa)}")
    k(f"v_perm_b32 {v(UB)}, {v(UB)}, {v(UA)}, {v(vSb)}")
    lg.issue(f"ds_write_b32 {v(vIe)}, {v(UE)} offset:32")
    k(f"v_mov_b32 {v(UA)}, {v(a)}")
    lg.issue(f"ds_write_b64 {v(vIa)}, {v(UA + 2, 2)} offset:40")
    lg.issue(f"ds_write_b64 {v(vIb)}, {v(UB + 2, 2)} offset:48")
    lg.issue(f"ds_write_b64 {v(vIb)}, {v(UB, 2)} offset:8")
    lg.issue(f"ds_write_b64 {v(vIa)}, {v(UA, 2)}")
    for st, xx in ((Sd, vd), (Sm, vmr)):
        k(f"v_mul_f32 {v(st + 1)}, -{v(st)}, {v(st + 1)}")
        k(f"v_add_f32 {v(st)}, 1.0, {v(st)}")
    for st, xx in ((Sd, vd), (Sm, vmr)):
        for j in range(8):
            k(f"v_fma_f32 {v(xx + j)}, {v(xx + j)}, {v(st)}, {v(st + 1)}")
    lg.all()
    k("s_barrier")
    stamp(lg, "bar5")
    V.free(UA, 4), V.free(UB, 4), V.free(UE), V.free(Sd, 2), V.free(Sm, 2), V.free(rowl)
    keep_retry = (UA, UB, UE, Sd, Sm)

    acc = [V(4), V(4), V(4)]
    fr = [[V(4), V(4), V(4)], [V(4), V(4), V(4)]]

    def s2reads(ks):
        for m, off in enumerate((0, 40, 8)):
            for rd in range(2):
                lg.issue(f"ds_read_b64_tr_b16 {v(fr[ks & 1][m] + 2 * rd, 2)}, {v(vIr)} offset:{ks * 3072 + rd * 768 + off}", f"s2_{ks}_{m}")

    s2reads(0), s2reads(1)
    for ks in range(8):
        for m in range(3):
            lg.wait(f"s2_{ks}_{m}")
            mf(acc[m], fr[ks & 1][m], K2 + 4 * ks, acc[m] if ks else None)
        if ks + 2 < 8:
            s2reads(ks + 2)
        wdma(sched.get(f"s2_{ks}", 0))
    for j in range(4):
        k(f"v_add_f32 {v(vd + j)}, {v(vd + j)}, {v(acc[0] + j)}")
    for j in range(3):
        k(f"v_add_f32 {v(vmr + 5 + j)}, {v(vmr + 5 + j)}, {v(acc[0] + 3 - j)}")
    for j in range(4):
        k(f"v_add_f32 {v(vd + 4 + j)}, {v(vd + 4 + j)}, {v(acc[1] + j)}")
        k(f"v_add_f32 {v(vmr + 1 + j)}, {v(vmr + 1 + j)}, {v(acc[1] + 3 - j)}")
    k(f"v_add_f32 {v(vmr)}, {v(vmr)}, {v(acc[2])}")
    od, om = fr[0][0], fr[0][1]
    for dst, src, adr in ((od, vd, vOd), (om, vmr, vOm)):
        for j in range(4):
            k(f"v_cvt_pk_bf16_f32 {v(dst + j)}, {v(src + 2 * j)}, {v(src + 2 * j + 1)}")
        vm.issue(f"buffer_store_dwordx4 {v(dst, 4)}, {v(adr)}, {OUT}, 0 offen{P['outflag']}")
    k(f"s_or_b64 vcc, {s(sd0, 2)}, {s(sm0, 2)}")
    k("s_cbranch_scc1 FINW")
    k("FIND:")
    stamp(lg, "s2done")
    wdma(12)
    V.free(K2, 32)
    for x in acc + fr[1] + [fr[0][2]]:
        V.free(x, 4)

    Wf = [[V(4) for _ in range(4)] for _ in range(2)]
    aG, aU = V(4), V(4)
    negm, rl2, rs2 = V(), V(), V()
    k(f"v_xor_b32 {v(negm)}, 0x80000000, {v(Ss + 1)}")
    k(f"v_mul_f32 {v(rl2)}, {fl(-1.4426950408889634)}, {v(Ss)}")
    k(f"v_mul_f32 {v(rs2)}, {v(Ss)}, {v(Ss)}")
    vm.wait("xb")
    for ks in range(4):
        for m, nm in enumerate("gu"):
            vm.wait(f"{nm}{ks}")
            for hj in range(2):
                lg.issue(f"ds_read_b64_tr_b16 {v(Wf[m][ks] + 2 * hj, 2)}, {v(vGU)} offset:{m * 32768 + ks * 1024 + hj * 256}", f"w{m}{ks}")
        if ks >= 1:
            for m, ac in enumerate((aG, aU)):
                lg.wait(f"w{m}{ks - 1}")
                mf(ac, Wf[m][ks - 1], xb + 4 * (ks - 1), ac if ks > 1 else None)
    for m, ac in enumerate((aG, aU)):
        lg.wait(f"w{m}3")
        mf(ac, Wf[m][3], xb + 12, ac)
    stamp(lg, "gu")
    for ac in (aG, aU):
        for j in range(4):
            k(f"v_fmac_f32_dpp {v(ac + j)}, {v(ac + j)}, {v(negm)} quad_perm:[2,2,2,2] row_mask:0xf bank_mask:0xf")
    k(f"s_mov_b64 exec, {s(sN2, 2)}")
    lg.issue(f"ds_write_b128 {v(vXw)}, {v(aG, 4)} offset:{M_XCH}")
    lg.issue(f"ds_write_b128 {v(vXw)}, {v(aU, 4)} offset:{M_XCH + 256}")
    k("s_mov_b64 exec, -1")
    lg.all()
    k("s_barrier")
    stamp(lg, "bar4")
    k("s_cmp_ge_u32 s2, 224")
    k("s_cbranch_scc1 CIDLE")
    lg.issue(f"ds_read_b128 {v(aG, 4)}, {v(vXr)} offset:{M_XCH}", "hg")
    lg.issue(f"ds_read_b128 {v(aU, 4)}, {v(vXr)} offset:{M_XCH + 256}", "hu")
    lg.wait("hg")
    for sh in (2, 4, 8):
        for ac in (aG, aU):
            if ac == aU:
                lg.wait("hu")
            for j in range(4):
                k(f"v_add_f32_dpp {v(ac + j)}, {v(ac + j)}, {v(ac + j)} row_ror:{sh} row_mask:0xf bank_mask:0xf")
    e = V(4)
    for j in range(4):
        k(f"v_mul_f32 {v(e + j)}, {v(aG + j)}, {v(rl2)}")
    for j in range(4):
        k(f"v_exp_f32 {v(e + j)}, {v(e + j)}")
        k(f"v_mul_f32 {v(aG + j)}, {v(aG + j)}, {v(aU + j)}")
    for j in range(4):
        k(f"v_add_f32 {v(e + j)}, 1.0, {v(e + j)}")
        k(f"v_mul_f32 {v(aG + j)}, {v(aG + j)}, {v(rs2)}")
    for j in range(4):
        k(f"v_rcp_f32 {v(e + j)}, {v(e + j)}")
    Dn = Wf[0]
    Bm = Wf[1]
    vm.wait("d3")
    stamp(lg, "dn_in")
    for z in range(8):
        lg.issue(f"ds_read_b64_tr_b16 {v(Dn[z >> 1] + 2 * (z & 1), 2)}, {v(vDn + z)}", f"dn{z >> 1}")
    for j in range(4):
        k(f"v_mul_f32 {v(aG + j)}, {v(aG + j)}, {v(e + j)}")
    k(f"v_cvt_pk_bf16_f32 {v(e)}, {v(aG)}, {v(aG + 1)}")
    k(f"v_cvt_pk_bf16_f32 {v(e + 1)}, {v(aG + 2)}, {v(aG + 3)}")
    for z in range(8):
        for j in range(2):
            k(f"v_cndmask_b32 {v(Bm[z >> 1] + 2 * (z & 1) + j)}, 0, {v(e + j)}, {s(sZ[z], 2)}")
    for m in range(4):
        lg.wait(f"dn{m}")
        mf(aU, Dn[m], Bm[m], aU if m else None)
    k(f"v_cvt_pk_bf16_f32 {v(e)}, {v(aU)}, {v(aU + 1)}")
    k(f"v_cvt_pk_bf16_f32 {v(e + 1)}, {v(aU + 2)}, {v(aU + 3)}")
    k(f"v_mov_b32_dpp {v(e + 2)}, {v(e)} quad_perm:[2,3,0,1] row_mask:0xf bank_mask:0xf")
    k(f"v_mov_b32_dpp {v(e + 3)}, {v(e + 1)} quad_perm:[2,3,0,1] row_mask:0xf bank_mask:0xf")
    k("s_mov_b32 exec_lo, 0x33333333")
    k("s_mov_b32 exec_hi, 0x33333333")
    vm.issue(f"buffer_store_dwordx4 {v(e, 4)}, {v(vPo)}, {WS}, {s(sPo)} offen sc1")
    stamp(lg, "pst")
    k("CEND:")
    if prof:
        stamp_flush(lg, sW, stamps)
    prof_names = {"compute": list(stamps)}
    k("END:")
    k("s_endpgm")

    k("CIDLE:")
    k("s_waitcnt vmcnt(0)")
    k("s_branch CEND")
    k("SPECC:")
    mf(Xr0, Ar, vC0), mf(Xi0, Ar, vNS0), mf(Xr1, Ai, vC1), mf(Xi1, Ai, vS1)
    k("s_branch SPECD")
    k("URETRY:")
    k(f"s_add_u32 {s(sCnt)}, {s(sCnt)}, 1")
    k(f"s_cmp_ge_u32 {s(sCnt)}, {SPIN}")
    k("s_cbranch_scc1 UOK")
    tile_loads(k)
    k(f"buffer_load_dwordx2 {v(Ss, 2)}, {v(vSel)}, {WS}, {s(sSt)} offen sc1")
    k("s_waitcnt vmcnt(0)")
    k("s_branch UCHK")
    k("FINW:")
    for msk, adr, src, off in ((sd0, vFd, vd, M_FIN), (sm0, vFm, vmr, M_FIN + 256)):
        k(f"s_mov_b64 exec, {s(msk, 2)}")
        k(f"ds_write_b128 {v(adr)}, {v(src, 4)} offset:{off}")
        k(f"ds_write_b128 {v(adr)}, {v(src + 4, 4)} offset:{off + 16}")
    k("s_mov_b64 exec, -1")
    k("s_waitcnt lgkmcnt(0)")
    k("s_branch FIND")
    vtop = V.top

    V.busy, S.busy, stamps[:] = list(common[0]), list(common[1]), list(common[2])
    vm, lg = Counter(k, "vmcnt", 63), Counter(k, "lgkmcnt", 15)
    k("COMM:")
    k("s_setprio 3")
    G = V(4)
    M1 = V(4)
    vZ, a, b, vSo, vGo, vL16 = (V() for _ in range(6))
    sEp, sSt, sGp, sGr, sCnt = (S() for _ in range(5))
    sNo = S(2)
    k(f"v_mov_b32 {v(vZ)}, 0")
    k(f"s_mov_b32 {s(sEp)}, {W_EPOCH}")
    for j in range(4):
        k(f"v_mov_b32 {v(M1 + j)}, -1")
    k(f"v_lshrrev_b32 {v(a)}, 2, {v(vL)}")
    k(f"v_and_b32 {v(b)}, 3, {v(vL)}")
    k(f"v_lshlrev_b32 {v(a)}, 14, {v(a)}")
    k(f"v_lshl_add_u32 {v(a)}, {v(b)}, 4, {v(a)}")
    k(f"v_lshlrev_b32 {v(vL16)}, 4, {v(vL)}")
    k(f"s_lshl_b32 {s(sT)}, {s(sQ)}, 7")
    k(f"s_lshl_b32 {s(sT2)}, {s(sHF)}, 6")
    k(f"s_add_u32 {s(sT)}, {s(sT)}, {s(sT2)}")
    k("s_waitcnt lgkmcnt(0)")
    vm.issue(f"buffer_load_dwordx2 {v(G + 2, 2)}, {v(vZ)}, {WS}, {s(sEp)} offen sc1", "ep")
    for p in range(8):
        vm.issue(f"buffer_store_dwordx4 {v(M1, 4)}, {v(a)}, {WS}, {s(sT)} offen sc1")
        if p < 7:
            k(f"s_add_u32 {s(sT)}, {s(sT)}, 262144")
    k(f"s_mul_i32 {s(sT)}, s2, 3584")
    k(f"s_add_u32 {s(sT)}, {s(sT)}, {W_PART}")
    for off in (0, 1024, 2048, 2560):
        vm.issue(f"buffer_store_dwordx4 {v(M1, 4)}, {v(vL16)}, {WS}, {s(sT)} offen offset:{off} sc1")
    k(f"v_lshlrev_b32 {v(b)}, 8, {v(vL)}")
    k(f"v_add_u32 {v(a)}, {s(sQ)}, {v(b)}")
    k(f"v_sub_u32 {v(b)}, {s(sRP)}, {v(b)}")
    k(f"s_cmp_eq_u32 {s(sHF)}, 0")
    k("s_cselect_b64 vcc, 0, -1")
    k(f"v_cndmask_b32 {v(a)}, {v(a)}, {v(b)}, vcc")
    k(f"v_and_b32 {v(b)}, 7, {v(a)}")
    k(f"v_and_b32 {v(a)}, 0x7f8, {v(a)}")
    k(f"v_lshl_add_u32 {v(vSo)}, {v(b)}, 11, {v(a)}")
    k(f"s_mov_b32 {s(sSt)}, {W_STATS}")
    k("s_mov_b64 exec, 0xff")
    vm.issue(f"buffer_store_dwordx2 {v(M1, 2)}, {v(vSo)}, {WS}, {s(sSt)} offen sc1")
    k("s_mov_b64 exec, -1")
    k(f"v_lshlrev_b32 {v(vGo)}, 12, {v(vL)}")
    k(f"s_lshl_b32 {s(sGp)}, s2, 4")
    k(f"s_add_u32 {s(sGp)}, {s(sGp)}, {W_GRAN}")
    k(f"s_lshl_b32 {s(sGr)}, {s(sX8)}, 12")
    k(f"s_add_u32 {s(sGr)}, {s(sGr)}, {W_GRAN}")
    k(f"s_mov_b32 {s(sCnt)}, 0")
    vRm = V()
    k(f"s_lshl_b32 {s(sT)}, {s(sHF)}, 5")
    k(f"v_lshlrev_b32 {v(a)}, 2, {v(vL)}")
    k(f"v_add_u32 {v(vRm)}, {s(sT)}, {v(a)}")
    if P["pads"]:
        k("s_mov_b64 exec, 0")
        k("; PADTOUCH")
        k("s_mov_b64 exec, -1")
    vm.wait("ep")
    k(f"v_add_u32 {v(G + 2)}, 2, {v(G + 2)}")
    k(f"v_or_b32 {v(G + 2)}, 1, {v(G + 2)}")
    k(f"v_readfirstlane_b32 {s(sNo + 1)}, {v(G + 3)}")
    k(f"v_readfirstlane_b32 {s(sNo)}, {v(G + 2)}")
    stamp(lg, "nonce")
    k("s_barrier")
    Kq, St = V(8), V(2)
    lg.issue(f"ds_read_b128 {v(Kq, 4)}, {v(vZ)} offset:{M_KEY}", "k0")
    lg.issue(f"ds_read_b128 {v(Kq + 4, 4)}, {v(vZ)} offset:{M_KEY + 16}", "k1")
    lg.issue(f"ds_read_b32 {v(St)}, {v(vRm)} offset:{M_RS}")
    lg.issue(f"ds_read_b32 {v(St + 1)}, {v(a)} offset:{M_MEAN}", "st")
    h1, m1, h2, m2 = (V() for _ in range(4))
    lg.wait("k0")
    k(f"v_max3_u32 {v(h1)}, {v(Kq)}, {v(Kq + 1)}, {v(Kq + 2)}")
    k(f"v_med3_u32 {v(m1)}, {v(Kq)}, {v(Kq + 1)}, {v(Kq + 2)}")
    lg.wait("k1")
    k(f"v_max3_u32 {v(h2)}, {v(Kq + 3)}, {v(Kq + 4)}, {v(Kq + 5)}")
    k(f"v_med3_u32 {v(m2)}, {v(Kq + 3)}, {v(Kq + 4)}, {v(Kq + 5)}")
    k(f"v_med3_u32 {v(b)}, {v(h1)}, {v(h2)}, {v(Kq + 6)}")
    k(f"v_max3_u32 {v(h1)}, {v(h1)}, {v(h2)}, {v(Kq + 6)}")
    k(f"v_max3_u32 {v(b)}, {v(b)}, {v(m1)}, {v(m2)}")
    k(f"v_max_u32 {v(G)}, {v(h1)}, {v(Kq + 7)}")
    k(f"v_med3_u32 {v(G + 1)}, {v(h1)}, {v(b)}, {v(Kq + 7)}")
    k("s_mov_b64 exec, 0xff")
    vm.all()
    vm.issue(f"buffer_store_dwordx4 {v(G, 4)}, {v(vGo)}, {WS}, {s(sGp)} offen sc1")
    lg.wait("st")
    vm.issue(f"buffer_store_dwordx2 {v(St, 2)}, {v(vSo)}, {WS}, {s(sSt)} offen sc1")
    k("s_mov_b64 exec, -1")
    stamp(lg, "pub")
    if P["early_bar"]:
        k("s_barrier")
    k("s_barrier")
    Q = V(16)
    c0, c1, c2_ = S(2), S(2), S(2)
    k("POLL:")
    for j in range(4):
        k(f"buffer_load_dwordx4 {v(Q + 4 * j, 4)}, {v(vL16)}, {WS}, {s(sGr)} offen offset:{1024 * j} sc1")
    k(f"s_add_u32 {s(sCnt)}, {s(sCnt)}, 1")
    k("s_waitcnt vmcnt(3)")
    k(f"v_cmp_eq_u64 vcc, {s(sNo, 2)}, {v(Q + 2, 2)}")
    k("s_waitcnt vmcnt(2)")
    k(f"v_cmp_eq_u64 {s(c0, 2)}, {s(sNo, 2)}, {v(Q + 6, 2)}")
    k(f"v_max_u32 {v(m1)}, {v(Q + 1)}, {v(Q + 5)}")
    k(f"v_max_u32 {v(h1)}, {v(Q)}, {v(Q + 4)}")
    k(f"v_med3_u32 {v(m1)}, {v(Q)}, {v(Q + 4)}, {v(m1)}")
    k("s_waitcnt vmcnt(1)")
    k(f"v_cmp_eq_u64 {s(c1, 2)}, {s(sNo, 2)}, {v(Q + 10, 2)}")
    k(f"s_and_b64 vcc, vcc, {s(c0, 2)}")
    k("s_waitcnt vmcnt(0)")
    k(f"v_cmp_eq_u64 {s(c2_, 2)}, {s(sNo, 2)}, {v(Q + 14, 2)}")
    k(f"v_max_u32 {v(m2)}, {v(Q + 9)}, {v(Q + 13)}")
    k(f"v_max_u32 {v(h2)}, {v(Q + 8)}, {v(Q + 12)}")
    k(f"v_med3_u32 {v(m2)}, {v(Q + 8)}, {v(Q + 12)}, {v(m2)}")
    k(f"s_and_b64 vcc, vcc, {s(c1, 2)}")
    k(f"s_and_b64 vcc, vcc, {s(c2_, 2)}")
    k("s_cmp_eq_u64 vcc, -1")
    k("s_cbranch_scc1 GOT")
    k(f"s_cmp_lt_u32 {s(sCnt)}, {SPIN}")
    k("s_cbranch_scc1 POLL")
    k("GOT:")
    vm.done = vm.n
    stamp(lg, "got")
    k(f"v_max_u32 {v(m1)}, {v(m1)}, {v(m2)}")
    k(f"v_med3_u32 {v(m1)}, {v(h1)}, {v(h2)}, {v(m1)}")
    k(f"v_max_u32 {v(h1)}, {v(h1)}, {v(h2)}")
    for ctl in ("row_ror:8 row_mask:0xf", "row_ror:4 row_mask:0xf", "row_ror:2 row_mask:0xf", "row_ror:1 row_mask:0xf",
                "row_bcast:15 row_mask:0xa", "row_bcast:31 row_mask:0xc"):
        k(f"v_mov_b32_dpp {v(h2)}, {v(h1)} {ctl} bank_mask:0xf")
        k(f"v_max_u32_dpp {v(m2)}, {v(m1)}, {v(m1)} {ctl} bank_mask:0xf")
        k(f"v_med3_u32 {v(m1)}, {v(h1)}, {v(h2)}, {v(m2)}")
        k(f"v_max_u32 {v(h1)}, {v(h1)}, {v(h2)}")
    k(f"v_and_b32 {v(St)}, 0x7ff, {v(h1)}")
    k(f"v_and_b32 {v(St + 1)}, 0x7ff, {v(m1)}")
    k("s_mov_b32 exec_lo, 0")
    k("s_brev_b32 exec_hi, 1")
    lg.issue(f"ds_write_b64 {v(vZ)}, {v(St, 2)} offset:{M_SEL}")
    k("s_mov_b64 exec, -1")
    lg.all()
    k("s_barrier")
    stamp(lg, "sel")
    sK = S(2)
    k(f"v_readlane_b32 {s(sK)}, {v(h1)}, 63")
    k(f"v_readlane_b32 {s(sK + 1)}, {v(m1)}, 63")
    k("s_cmp_lg_u32 s2, 0")
    k("s_cbranch_scc1 NOEP")
    k("s_mov_b64 exec, 1")
    k(f"buffer_store_dwordx2 {v(G + 2, 2)}, {v(vZ)}, {WS}, {s(sEp)} offen sc1")
    k("s_mov_b64 exec, -1")
    k("NOEP:")
    sOwnM, sBlk, sWant, sRole, sKey, sRow, sCb, sPb = (S() for _ in range(8))
    k(f"s_and_b32 {s(sBlk)}, {s(sU)}, 15")
    k(f"s_lshr_b32 {s(sWant)}, {s(sU)}, 4")
    k(f"s_lshl_b32 {s(sWant)}, {s(sWant)}, 10")
    k(f"s_or_b32 {s(sWant)}, {s(sWant)}, {s(sX8)}")
    k(f"s_mov_b32 {s(sOwnM)}, 0")
    for role in range(4):
        if role < 2:
            k(f"s_and_b32 {s(sT)}, {s(sK + role)}, 0x407")
        else:
            k(f"s_sub_u32 {s(sT)}, 0, {s(sK + role - 2)}")
            k(f"s_and_b32 {s(sT)}, {s(sT)}, 0x407")
        k(f"s_cmp_eq_u32 {s(sT)}, {s(sWant)}")
        k(f"s_cselect_b32 {s(sT)}, {1 << role}, 0")
        k(f"s_or_b32 {s(sOwnM)}, {s(sOwnM)}, {s(sT)}")
    k("s_cbranch_scc0 MEND")
    As = V(4)
    Pd = V(56)
    vN, vFo, vOo, sg = V(), V(), V(), V()
    ac, bs = V(4), V(4)
    k(f"v_and_b32 {v(vN)}, 15, {v(vL)}")
    k(f"v_and_b32 {v(a)}, 1, {v(vL)}")
    k(f"v_lshlrev_b32 {v(a)}, 4, {v(a)}")
    k(f"v_mov_b32 {v(b)}, 0x3f80")
    k(f"v_lshlrev_b32 {v(a)}, {v(a)}, {v(b)}")
    k(f"v_lshrrev_b32 {v(b)}, 1, {v(vN)}")
    for j in range(4):
        k(f"v_cmp_eq_u32 vcc, {j}, {v(b)}")
        k(f"v_cndmask_b32 {v(As + j)}, 0, {v(a)}, vcc")
    k(f"v_and_b32 {v(a)}, 3, {v(vL)}")
    k(f"v_bfe_u32 {v(b)}, {v(vL)}, 4, 1")
    k(f"v_lshl_add_u32 {v(a)}, {v(a)}, 1, {v(b)}")
    k(f"v_lshlrev_b32 {v(vFo)}, 4, {v(a)}")
    k(f"v_lshlrev_b32 {v(vOo)}, 3, {v(a)}")
    k("s_barrier")
    k("s_barrier")
    stamp(lg, "fin")
    k("ROLE:")
    k(f"s_ff1_i32_b32 {s(sRole)}, {s(sOwnM)}")
    k(f"s_bitset0_b32 {s(sOwnM)}, {s(sRole)}")
    k(f"s_bitcmp1_b32 {s(sRole)}, 0")
    k(f"s_cselect_b32 {s(sKey)}, {s(sK + 1)}, {s(sK)}")
    k(f"s_cselect_b32 {s(sPb)}, 32, 0")
    k(f"s_sub_u32 {s(sCb)}, 31, {s(sBlk)}")
    k(f"s_bitcmp1_b32 {s(sRole)}, 1")
    k(f"s_cselect_b32 {s(sCb)}, {s(sCb)}, {s(sBlk)}")
    k(f"s_add_u32 {s(sPb)}, {s(sPb)}, {s(sCb)}")
    k(f"s_mul_i32 {s(sPb)}, {s(sPb)}, 14336")
    k(f"s_add_u32 {s(sPb)}, {s(sPb)}, {W_PART}")
    k(f"s_and_b32 {s(sRow)}, {s(sKey)}, 0x7ff")
    k(f"s_lshl_b32 {s(sRow)}, {s(sRow)}, 11")
    k(f"s_lshl_b32 {s(sCb)}, {s(sCb)}, 6")
    k(f"s_add_u32 {s(sRow)}, {s(sRow)}, {s(sCb)}")
    k(f"s_lshl_b32 {s(sT)}, {s(sRole)}, 7")
    k(f"v_add_u32 {v(a)}, {s(sT)}, {v(vFo)}")
    k(f"ds_read_b128 {v(bs, 4)}, {v(a)} offset:{M_FIN}")
    k(f"s_mov_b32 {s(sCnt)}, 0")
    k(f"v_mov_b32 {v(sg)}, {s(sKey)}")
    k(f"v_ashrrev_i32 {v(b)}, 31, {v(sg)}")
    k(f"v_not_b32 {v(b)}, {v(b)}")
    k(f"v_or_b32 {v(b)}, 0x80000000, {v(b)}")
    k(f"v_xor_b32 {v(sg)}, {v(sg)}, {v(b)}")
    k(f"v_mul_f32 {v(sg)}, {fl(-1.4426950408889634)}, {v(sg)}")
    k(f"v_exp_f32 {v(sg)}, {v(sg)}")
    k(f"v_add_f32 {v(sg)}, 1.0, {v(sg)}")
    k(f"v_rcp_f32 {v(sg)}, {v(sg)}")
    k("RPOLL:")
    k(f"s_mov_b32 {s(sT)}, {s(sPb)}")
    for j in range(14):
        k(f"buffer_load_dwordx4 {v(Pd + 4 * j, 4)}, {v(vL16)}, {WS}, {s(sT)} offen offset:{(j & 3) * 1024} sc1")
        if j & 3 == 3:
            k(f"s_add_u32 {s(sT)}, {s(sT)}, 4096")
    k(f"s_add_u32 {s(sCnt)}, {s(sCnt)}, 1")
    for j in range(14):
        k(f"s_waitcnt vmcnt({13 - j})")
        mf(ac, As, Pd + 4 * j, ac if j else None)
    k(f"s_cmp_ge_u32 {s(sCnt)}, {SPIN}")
    k("s_cbranch_scc1 RGOT")
    k(f"v_cmp_u_f32 vcc, {v(ac)}, {v(ac)}")
    k("s_cbranch_vccnz RPOLL")
    k("RGOT:")
    for sh in (4, 8):
        for j in range(4):
            k(f"v_add_f32_dpp {v(ac + j)}, {v(ac + j)}, {v(ac + j)} row_ror:{sh} row_mask:0xf bank_mask:0xf")
    k("s_waitcnt lgkmcnt(0)")
    for j in range(4):
        k(f"v_fmac_f32 {v(bs + j)}, {v(ac + j)}, {v(sg)}")
    k(f"v_cvt_pk_bf16_f32 {v(bs)}, {v(bs)}, {v(bs + 1)}")
    k(f"v_cvt_pk_bf16_f32 {v(bs + 1)}, {v(bs + 2)}, {v(bs + 3)}")
    k("s_mov_b64 exec, 0x000f000f")
    k(f"buffer_store_dwordx2 {v(bs, 2)}, {v(vOo)}, {OUT}, {s(sRow)} offen{P['outflag']}")
    k("s_mov_b64 exec, -1")
    k(f"s_cmp_lg_u32 {s(sOwnM)}, 0")
    k("s_cbranch_scc1 ROLE")
    stamp(lg, "done")
    k("MEND:")
    if prof:
        stamp_flush(lg, sW, stamps)
    prof_names["comm"] = list(stamps)
    k("s_endpgm")

    k.vgprs = max(vtop, V.top)
    k.lines, npad = hazard.pad(k.lines)
    text = build([k], single=True, notes="generated by gen/fused.py")
    text = text.replace(".p2align 8\n.type", ".p2align 12\n.type")
    open(path, "w").write(text)
    return dict(vgprs=k.vgprs, nops=npad, lines=len(k.lines), prof=prof_names)


if __name__ == "__main__":
    print(gen("f0.s"))
    print(gen("f0p.s", prof=True))
```

```python
import struct
import sys
sys.path.insert(0, "gen")
from asmlib import Kernel, build, KA, SIZES, v, s
import hazard

NAME = "parallel_sum__spectral_fnet__moe_arch_mod__prompt_kernel"

XS, T1, T2, MISC, WBASE = 0, 32768, 49408, 58112, 61440
M_RS, M_KEY, M_SEL, M_MEAN, M_XN, M_FIN = MISC, MISC + 64, MISC + 128, MISC + 160, MISC + 256, MISC + 2304
LDS_BYTES = WBASE + 3 * 32768
W_U, W_STATS, W_EPOCH, W_GRAN, W_PART, W_HX, W_END, W_PROF = 0, 0x200000, 0x208000, 0x210000, 0x220000, 0x290000, 0x300000, 0x400000
OOB = 0x7000000
SPIN = 4096


def fl(x):
    return hex(struct.unpack("<I", struct.pack("<f", x))[0])


class Alloc:
    def __init__(self, first, limit):
        self.busy = [i < first for i in range(limit)]
        self.top = first

    def __call__(self, n=1, align=None):
        al = align or (2 if n > 1 else 1)
        if n == 1:
            for b in range(len(self.busy) - 1):
                if not self.busy[b] and self.busy[b ^ 1] and b < self.top:
                    self.busy[b] = True
                    return b
        for b in range(0, len(self.busy) - n + 1, al):
            if not any(self.busy[b:b + n]):
                for i in range(b, b + n):
                    self.busy[i] = True
                self.top = max(self.top, b + n)
                return b
        raise RuntimeError("out of registers")

    def free(self, b, n=1):
        for i in range(b, b + n):
            assert self.busy[i], i
            self.busy[i] = False


class Counter:
    def __init__(self, k, name, cap):
        self.k, self.name, self.cap = k, name, cap
        self.n, self.done, self.tags, self.dirty = 0, 0, {}, False

    def issue(self, text, tag=None):
        self.k(text)
        self.n += 1
        if tag:
            self.tags[tag] = self.n

    def wait(self, *tags):
        tgt = max(self.tags[t] for t in tags)
        if tgt <= self.done:
            return
        left = self.n - tgt
        if self.dirty:
            left, self.dirty = 0, False
        left = min(left, self.cap)
        self.k(f"s_waitcnt {self.name}({left})")
        self.done = self.n - left

    def all(self):
        if self.done < self.n or self.dirty:
            self.k(f"s_waitcnt {self.name}(0)")
        self.done, self.dirty = self.n, False


DEFAULT = dict(
    prof=False,
    sched=dict(pro=2, bar1=1, bar1b=1, ust=1, c2=3, sel=2, gu=2),
    wnt=True, outflag="", pads=False, late_c1=True, merge3=False, xnt=False,
)


def gen(path, **over):
    P = dict(DEFAULT)
    P.update(over)
    prof = P["prof"]
    k = Kernel(NAME, 256, 576, lds=LDS_BYTES)
    V = Alloc(1, 168)
    S = Alloc(32, 102)
    vm, lg = Counter(k, "vmcnt", 63), Counter(k, "lgkmcnt", 15)
    X, WS, WG, WU, WD, OUT, WR = (s(i, 4) for i in (4, 8, 12, 16, 20, 24, 28))
    stamps = []
    sStamp = S(30, 2) if prof else None

    def stamp(lgc, name):
        if prof:
            i = len(stamps)
            assert i < 15
            k(f"s_memrealtime {s(sStamp + 2 * i, 2)}")
            stamps.append(name)
            lgc.dirty = True

    DBG_SLOT = {"start": 0, "x_in": 1, "bar1": 2, "ust": 3, "pre3": 4, "bar3": 5, "tile": 6, "s2done": 7, "gu": 8, "dn_in": 9,
                "pst": 10, "pub": 11, "got": 12, "done": 13, "hx": 14}

    def stamp_flush(lgc, slot_sreg, names):
        t, a = V(), V()
        k("s_mov_b64 exec, -1")
        k("s_waitcnt lgkmcnt(0)")
        k(f"v_mov_b32 {v(t)}, 0")
        if prof == "none":
            V.free(t), V.free(a)
            return
        if prof == "dbg":
            lbl = f"NOFL{len(names)}"
            k(f"s_and_b32 s3, {s(slot_sreg)}, 7")
            k(f"s_cbranch_scc1 {lbl}")
            k(f"s_load_dwordx2 s[4:5], s[0:1], {KA['dbg']}")
            k("s_mov_b32 s6, 64")
            for i, nm in enumerate(names):
                if nm in DBG_SLOT:
                    k(f"v_writelane_b32 {v(t)}, {s(sStamp + 2 * i)}, {DBG_SLOT[nm]}")
            k(f"s_not_b32 s3, {s(sStamp)}")
            k(f"v_writelane_b32 {v(t)}, s3, 15")
            k(f"v_lshlrev_b32 {v(a)}, 2, {v(vL)}")
            k("s_waitcnt lgkmcnt(0)")
            k("s_mov_b64 exec, 0xffff")
            k(f"buffer_atomic_umax {v(t)}, {v(a)}, s[4:7], 0 offen sc1")
            k("s_mov_b64 exec, -1")
            k(f"{lbl}:")
            V.free(t), V.free(a)
            return
        for i in range(len(names)):
            k(f"v_writelane_b32 {v(t)}, {s(sStamp + 2 * i)}, {i}")
        k(f"v_lshlrev_b32 {v(a)}, 2, {v(vL)}")
        k("s_lshl_b32 s3, s2, 4")
        k(f"s_add_u32 s3, s3, {s(slot_sreg)}")
        k("s_lshl_b32 s3, s3, 6")
        k(f"s_add_u32 s3, s3, {W_PROF}")
        k("s_mov_b64 exec, 0xffff")
        k(f"buffer_store_dword {v(t)}, {v(a)}, {WS}, s3 offen")
        k("s_mov_b64 exec, -1")
        V.free(t), V.free(a)

    npad = [0]

    def page_pad():
        if P["pads"]:
            i = npad[0]
            npad[0] += 1
            k(f"s_branch PAD{i}")
            k(".p2align 12")
            k(f"PAD{i}:")
            k(f"s_cbranch_execz PRET{i}")

    sW, sX8, sU, sHF, sQ, sRP, sT, sT2, sSl = (S() for _ in range(9))
    vL = V()
    k("s_cmp_ge_u32 s2, 256")
    k("s_cbranch_scc1 END")
    if prof:
        for i in range(1, 15):
            k(f"s_mov_b32 {s(sStamp + 2 * i)}, 0")
    stamp(lg, "start")
    for reg, nm in ((4, "x"), (28, "w_r"), (8, "ws"), (12, "w_gate"), (16, "w_up"), (20, "w_down"), (24, "out")):
        k(f"s_load_dwordx2 {s(reg, 2)}, s[0:1], {KA[nm]}")
    t0 = V()
    k(f"v_lshrrev_b32 {v(t0)}, 6, v0")
    k(f"v_and_b32 {v(vL)}, 63, v0")
    k(f"s_and_b32 {s(sX8)}, s2, 7")
    k(f"v_readfirstlane_b32 {s(sW)}, {v(t0)}")
    k(f"s_lshr_b32 {s(sT)}, s2, 4")
    k(f"s_lshl3_add_u32 {s(sQ)}, {s(sT)}, {s(sX8)}")
    k(f"s_lshr_b32 {s(sU)}, s2, 3")
    k(f"s_and_b32 {s(sHF)}, {s(sU)}, 1")
    k(f"s_cmp_eq_u32 {s(sQ)}, 0")
    k(f"s_cselect_b32 {s(sT)}, 128, {s(sQ)}")
    k(f"s_sub_u32 {s(sRP)}, 2048, {s(sT)}")
    k(f"s_mul_i32 {s(sSl)}, {s(sX8)}, 28")
    k(f"s_add_u32 {s(sSl)}, {s(sSl)}, {s(sU)}")
    k(f"s_mov_b32 s6, {SIZES['x']}")
    k("s_mov_b32 s7, 0x00020000")
    k(f"s_mov_b32 s10, {W_PROF + 0x100000 if prof else W_END}")
    k("s_mov_b32 s11, 0x00020000")
    k(f"s_mov_b32 s26, {SIZES['out']}")
    k("s_mov_b32 s27, 0x00020000")
    k(f"s_cmp_eq_u32 {s(sW)}, 8")
    k("s_cbranch_scc1 COMM")
    V.free(t0)
    common = (list(V.busy), list(S.busy), list(stamps))

    sOwn, sOth, sLo, sGU, sDN, sWm, sUs, sPart, sCb = (S() for _ in range(9))
    vXo = V()
    vN, vG, vR, vC, vG1, vUs = (V() for _ in range(6))
    M1 = V(4)
    k(f"s_lshl_b32 {s(sT)}, {s(sW)}, 8")
    k(f"s_add_u32 {s(sOwn)}, {s(sQ)}, {s(sT)}")
    k(f"s_sub_u32 {s(sT)}, {s(sRP)}, {s(sT)}")
    k(f"s_cmp_eq_u32 {s(sHF)}, 0")
    k(f"s_cselect_b32 {s(sOth)}, {s(sT)}, {s(sOwn)}")
    k(f"s_cselect_b32 {s(sOwn)}, {s(sOwn)}, {s(sT)}")
    k(f"s_lshl_b32 {s(sLo)}, {s(sW)}, 11")
    k(f"s_lshl_b32 {s(sT)}, {s(sHF)}, 14")
    k(f"s_add_u32 {s(sLo)}, {s(sLo)}, {s(sT)}")
    a, b = V(), V()
    k(f"v_and_b32 {v(a)}, 32, {v(vL)}")
    k(f"v_lshlrev_b32 {v(vXo)}, 4, {v(vL)}")
    k(f"v_lshrrev_b32 {v(vR)}, 2, {v(vL)}")
    k(f"v_xor_b32 {v(vXo)}, {v(vXo)}, {v(a)}")
    k(f"s_mov_b32 m0, {s(sLo)}")
    k(f"s_lshl_b32 {s(sT)}, {s(sOwn)}, 11")
    k(f"s_lshl_b32 {s(sOth)}, {s(sOth)}, 11")
    k(f"s_mov_b32 s30, {SIZES['w_r']}")
    k("s_mov_b32 s31, 0x00020000")
    k(f"v_and_b32 {v(vC)}, 3, {v(vL)}")
    k(f"v_lshlrev_b32 {v(a)}, 14, {v(vR)}")
    k(f"v_lshl_add_u32 {v(vUs)}, {v(vC)}, 4, {v(a)}")
    k(f"s_lshl_b32 {s(sUs)}, {s(sW)}, 18")
    k(f"s_lshl_b32 {s(sT2)}, {s(sQ)}, 7")
    k(f"s_add_u32 {s(sUs)}, {s(sUs)}, {s(sT2)}")
    k(f"s_lshl_b32 {s(sT2)}, {s(sHF)}, 6")
    k(f"s_add_u32 {s(sUs)}, {s(sUs)}, {s(sT2)}")
    for j in range(4):
        k(f"v_mov_b32 {v(M1 + j)}, -1")
    k(f"v_and_b32 {v(vN)}, 15, {v(vL)}")
    k(f"v_lshrrev_b32 {v(vG)}, 4, {v(vL)}")
    k(f"v_and_b32 {v(vR)}, 3, {v(vR)}")
    k(f"v_and_b32 {v(vG1)}, 1, {v(vG)}")
    k("s_waitcnt lgkmcnt(0)")
    lg.dirty = False
    vWr = V(8)
    xn = " nt" if P["xnt"] else ""
    vm.issue(f"buffer_load_dwordx4 {v(vXo)}, {X}, {s(sT)} offen{xn} lds")
    vm.issue(f"buffer_load_dwordx4 {v(vXo)}, {X}, {s(sT)} offen offset:1024{xn} lds")
    vm.issue(f"buffer_load_dwordx4 {v(vWr, 4)}, {v(vXo)}, {WR}, 0 offen")
    vm.issue(f"buffer_load_dwordx4 {v(vWr + 4, 4)}, {v(vXo)}, {WR}, 0 offen offset:1024", "own")
    vm.issue(f"buffer_store_dwordx4 {v(M1, 4)}, {v(vUs)}, {WS}, {s(sUs)} offen sc1", "clr")

    k("s_cmp_lt_u32 s2, 224")
    k(f"s_cselect_b32 s14, {SIZES['w_gate']}, 0")
    k("s_mov_b32 s15, 0x00020000")
    k("s_mov_b32 s18, s14")
    k("s_mov_b32 s19, 0x00020000")
    k("s_mov_b32 s22, s14")
    k("s_mov_b32 s23, 0x00020000")
    k(f"s_lshr_b32 {s(sCb)}, {s(sSl)}, 2")
    k(f"s_and_b32 {s(sPart)}, {s(sSl)}, 3")
    k(f"s_lshl3_add_u32 {s(sT)}, {s(sPart)}, {s(sW)}")
    k(f"s_mul_i32 {s(sGU)}, {s(sT)}, {32 * 7168}")
    k(f"s_lshl_b32 {s(sT)}, {s(sCb)}, 7")
    k(f"s_add_u32 {s(sGU)}, {s(sGU)}, {s(sT)}")
    k(f"s_lshr_b32 {s(sT)}, {s(sW)}, 2")
    k(f"s_lshl1_add_u32 {s(sT)}, {s(sCb)}, {s(sT)}")
    k(f"s_lshl_b32 {s(sDN)}, {s(sT)}, 16")
    k(f"s_and_b32 {s(sT)}, {s(sW)}, 3")
    k(f"s_lshl2_add_u32 {s(sT)}, {s(sPart)}, {s(sT)}")
    k(f"s_lshl_b32 {s(sT)}, {s(sT)}, 7")
    k(f"s_add_u32 {s(sDN)}, {s(sDN)}, {s(sT)}")
    k(f"s_lshl_b32 {s(sWm)}, {s(sW)}, 12")
    k(f"s_add_u32 {s(sWm)}, {s(sWm)}, {WBASE}")
    vDg, vDd = V(2), V(2)
    k(f"v_bfe_u32 {v(a)}, {v(vL)}, 1, 2")
    k(f"v_xor_b32 {v(a)}, {v(a)}, {v(vG1)}")
    k(f"v_and_b32 {v(b)}, 1, {v(vL)}")
    k(f"v_lshlrev_b32 {v(b)}, 4, {v(b)}")
    k(f"v_lshl_add_u32 {v(a)}, {v(a)}, 5, {v(b)}")
    k(f"v_lshrrev_b32 {v(b)}, 3, {v(vL)}")
    k(f"v_lshl_add_u32 {v(vDd)}, {v(b)}, 11, {v(a)}")
    k(f"v_mul_u32_u24 {v(b)}, 7168, {v(b)}")
    k(f"v_add_u32 {v(vDg)}, {v(a)}, {v(b)}")
    k(f"v_xor_b32 {v(vDd + 1)}, 64, {v(vDd)}")
    k(f"v_xor_b32 {v(vDg + 1)}, 64, {v(vDg)}")
    V.free(a), V.free(b), V.free(M1, 4)
    wq = [x for i in range(4) for x in (("g", i), ("u", i))] + [("d", i) for i in range(4)]
    sWo = S()
    nt = " nt" if P["wnt"] else ""

    def wdma(n=1, only=None):
        for _ in range(n):
            if not wq or (only and wq[0][0] not in only):
                return
            m, i = wq.pop(0)
            if m in "gu":
                k(f"s_add_u32 m0, {s(sWm)}, {i * 1024 + (32768 if m == 'u' else 0)}")
                k(f"s_add_u32 {s(sWo)}, {s(sGU)}, {i * 8 * 7168}")
                vm.issue(f"buffer_load_dwordx4 {v(vDg + (i & 1))}, {WG if m == 'g' else WU}, {s(sWo)} offen{nt} lds", f"{m}{i}")
            else:
                k(f"s_add_u32 m0, {s(sWm)}, {65536 + i * 1024}")
                k(f"s_add_u32 {s(sWo)}, {s(sDN)}, {i * 8 * 2048}")
                vm.issue(f"buffer_load_dwordx4 {v(vDd + (i & 1))}, {WD}, {s(sWo)} offen{nt} lds", f"d{i}")

    sched = P["sched"]

    def trig_pack(dst_cos, dst_sin, args):
        tc = V(2)
        for j in range(0, 8, 2):
            if dst_sin is not None:
                k(f"v_sin_f32 {v(tc)}, {v(args + j)}")
                k(f"v_sin_f32 {v(tc + 1)}, {v(args + j + 1)}")
            k(f"v_cos_f32 {v(args + j)}, {v(args + j)}")
            k(f"v_cos_f32 {v(args + j + 1)}, {v(args + j + 1)}")
            if dst_sin is not None:
                k(f"v_cvt_pk_bf16_f32 {v(dst_sin + j // 2)}, {v(tc)}, {v(tc + 1)}")
            k(f"v_cvt_pk_bf16_f32 {v(dst_cos + j // 2)}, {v(args + j)}, {v(args + j + 1)}")
        V.free(tc, 2)

    k(f"s_xor_b32 m0, {s(sLo)}, 16384")
    vm.issue(f"buffer_load_dwordx4 {v(vXo)}, {X}, {s(sOth)} offen{xn} lds")
    vm.issue(f"buffer_load_dwordx4 {v(vXo)}, {X}, {s(sOth)} offen offset:1024{xn} lds", "oth")
    V.free(vXo)
    wdma(sched.get("pro", 0))

    vKA = V(4)
    arg = V(8)
    f, ph, a = V(), V(), V()
    sE1 = S()
    k(f"s_lshl_b32 {s(sE1)}, {s(sHF)}, 3")
    k(f"s_cmp_eq_u32 {s(sHF)}, 0")
    k(f"s_cselect_b32 {s(sT)}, 1, 99")
    k(f"v_lshrrev_b32 {v(f)}, 1, {v(vN)}")
    k(f"v_add_u32 {v(f)}, {s(sE1)}, {v(f)}")
    k(f"v_and_b32 {v(ph)}, 1, {v(vN)}")
    k(f"v_cmp_ne_u32 vcc, {s(sT)}, {v(vN)}")
    k(f"v_cndmask_b32 {v(f)}, 16, {v(f)}, vcc")
    k(f"v_cndmask_b32 {v(ph)}, 0, {v(ph)}, vcc")
    k(f"v_cvt_f32_u32 {v(f)}, {v(f)}")
    k(f"v_cvt_f32_u32 {v(ph)}, {v(ph)}")
    k(f"v_cvt_f32_u32 {v(a)}, {v(vG)}")
    k(f"v_mul_f32 {v(f)}, {fl(1 / 32)}, {v(f)}")
    k(f"v_mul_f32 {v(ph)}, {fl(0.25)}, {v(ph)}")
    vG4f = V()
    k(f"v_mul_f32 {v(vG4f)}, 4.0, {v(a)}")
    k(f"v_add_f32 {v(a)}, {v(vG4f)}, {v(vG4f)}")
    k(f"v_fma_f32 {v(arg)}, {v(f)}, {v(a)}, {v(ph)}")
    for j in range(1, 8):
        k(f"v_add_f32 {v(arg + j)}, {v(arg + j - 1)}, {v(f)}")
    trig_pack(vKA, None, arg)
    vMk, vInv = V(), V()
    k(f"s_add_u32 {s(sT)}, {s(sT)}, -1")
    k(f"v_cmp_ne_u32 vcc, {s(sT)}, {v(vN)}")
    k(f"v_mov_b32 {v(vMk)}, {fl(-32.0)}")
    k(f"v_mov_b32 {v(vInv)}, {fl(1 / 1024)}")
    k(f"v_cndmask_b32 {v(vMk)}, {v(vMk)}, 0, vcc")
    wdma(sched.get("pro0", 0))

    vC0, vS0, vNS0, vC1, vS1, vNC1 = (V(4) for _ in range(6))
    sE2 = S()
    k(f"s_add_u32 {s(sE1)}, {s(sE1)}, {s(sW)}")
    k(f"s_cmp_eq_u32 {s(sE1)}, 0")
    k(f"s_cselect_b32 {s(sE2)}, 16, {s(sE1)}")
    k(f"s_add_u32 {s(sE2)}, {s(sE2)}, 992")

    def stepc_consts(T, f, a, arg):
        if T == 0:
            k(f"v_lshl_add_u32 {v(f)}, {v(vN)}, 5, {s(sE1)}")
            k(f"v_mov_b32 {v(a)}, 512")
            k(f"v_cmp_eq_u32 vcc, 0, {v(f)}")
            k(f"v_cndmask_b32 {v(f)}, {v(f)}, {v(a)}, vcc")
        else:
            k(f"v_lshlrev_b32 {v(f)}, 5, {v(vN)}")
            k(f"v_sub_u32 {v(f)}, {s(sE2)}, {v(f)}")
        k(f"v_cvt_f32_u32 {v(f)}, {v(f)}")
        k(f"v_mul_f32 {v(f)}, {v(vInv)}, {v(f)}")
        k(f"v_mul_f32 {v(arg)}, {v(f)}, {v(vG4f)}")
        k(f"v_fmamk_f32 {v(arg + 4)}, {v(f)}, {fl(16.0)}, {v(arg)}")
        for j in range(1, 4):
            k(f"v_add_f32 {v(arg + j)}, {v(arg + j - 1)}, {v(f)}")
            k(f"v_add_f32 {v(arg + 4 + j)}, {v(arg + 3 + j)}, {v(f)}")
        trig_pack(vC1 if T else vC0, vS1 if T else vS0, arg)
        for j in range(4):
            if T == 0:
                k(f"v_xor_b32 {v(vNS0 + j)}, 0x80008000, {v(vS0 + j)}")
            else:
                k(f"v_xor_b32 {v(vNC1 + j)}, 0x80008000, {v(vC1 + j)}")

    stepc_consts(0, f, a, arg)
    wdma(sched.get("pro1", 0))
    if not P["late_c1"]:
        stepc_consts(1, f, a, arg)
        wdma(sched.get("pro2", 0))
    V.free(arg, 8)

    vBf = V(8)
    dc = V()
    k(f"v_lshrrev_b32 {v(f)}, 1, {v(vN)}")
    k(f"v_and_b32 {v(ph)}, 1, {v(vN)}")
    k(f"v_cvt_f32_u32 {v(f)}, {v(f)}")
    k(f"v_cvt_f32_u32 {v(a)}, {v(ph)}")
    k(f"v_cmp_gt_u32 vcc, 32, {v(vL)}")
    k(f"v_mov_b32 {v(dc)}, {fl(-0.25)}")
    k(f"v_mul_f32 {v(f)}, {fl(0.125)}, {v(f)}")
    k(f"s_cmp_eq_u32 {s(sQ)}, 0")
    k("s_cbranch_scc1 BFQ0")
    k(f"v_mul_f32 {v(ph)}, {fl(0.25)}, {v(a)}")
    k(f"v_cndmask_b32 {v(dc)}, -{v(dc)}, {v(dc)}, vcc")
    k("BFGO:")
    k(f"v_cvt_f32_u32 {v(a)}, {v(vG1)}")
    k(f"v_mul_f32 {v(a)}, 4.0, {v(a)}")
    k(f"v_fma_f32 {v(vBf)}, {v(f)}, {v(a)}, {v(ph)}")
    for j in range(1, 4):
        k(f"v_add_f32 {v(vBf + j)}, {v(vBf + j - 1)}, {v(f)}")
    for j in range(4):
        k(f"v_add_f32 {v(vBf + 4 + j)}, {v(vBf + j)}, {v(dc)}")
    for j in range(8):
        k(f"v_cos_f32 {v(vBf + j)}, {v(vBf + j)}")
    bfq0 = (f, ph, a, dc)
    V.free(dc)

    vSo, vSt, vA0, vA1, vTd, vTp, vM1, vM2, vCr, vT2a, vT2b, vT2r, vRrd = (V() for _ in range(13))
    k(f"v_lshl_add_u32 {v(vSo)}, {v(vL)}, 4, {s(sLo)}")
    k(f"v_xor_b32 {v(vSt)}, 16384, {v(vSo)}")
    k(f"s_lshl_b32 {s(sT)}, {s(sW)}, 11")
    k(f"v_lshl_add_u32 {v(a)}, {v(vG)}, 9, {s(sT)}")
    k(f"v_lshl_add_u32 {v(a)}, {v(vR)}, 6, {v(a)}")
    k(f"v_lshl_add_u32 {v(a)}, {v(vG1)}, 5, {v(a)}")
    k(f"v_lshl_add_u32 {v(vA0)}, {v(vC)}, 3, {v(a)}")
    k(f"v_xor_b32 {v(vA1)}, 32, {v(vA0)}")
    k(f"s_cmp_lt_u32 {s(sW)}, 4")
    k(f"s_cselect_b32 {s(sT)}, 0, 3")
    k(f"s_lshl_b32 {s(sT2)}, {s(sW)}, 6")
    k(f"s_add_u32 {s(sT2)}, {s(sT2)}, {T1}")
    k(f"v_mul_u32_u24 {v(f)}, 1040, {v(vN)}")
    k(f"v_xor_b32 {v(a)}, {s(sT)}, {v(vG)}")
    k(f"v_add_u32 {v(f)}, {s(sT2)}, {v(f)}")
    k(f"v_lshl_add_u32 {v(vTd)}, {v(a)}, 4, {v(f)}")
    k(f"v_xor_b32 {v(a)}, 2, {v(a)}")
    k(f"v_lshl_add_u32 {v(vTp)}, {v(a)}, 4, {v(f)}")
    k(f"s_lshl_b32 {s(sT)}, {s(sW)}, 2")
    k(f"s_add_u32 {s(sT)}, {s(sT)}, {MISC}")
    k(f"v_mov_b32 {v(vM1)}, {s(sT)}")
    k(f"s_lshl_b32 {s(sT2)}, {s(sHF)}, 5")
    k(f"v_add_u32 {v(vM2)}, {s(sT2)}, {v(vM1)}")

    def stepc_addr(f, a):
        k(f"s_mul_i32 {s(sT)}, {s(sW)}, 2080")
        k(f"s_add_u32 {s(sT)}, {s(sT)}, {T1}")
        k(f"v_sub_u32 {v(a)}, 4, {v(vR)}")
        k(f"v_and_b32 {v(a)}, 3, {v(a)}")
        k(f"v_xor_b32 {v(a)}, {v(a)}, {v(vG)}")
        k(f"v_lshl_add_u32 {v(f)}, {v(vN)}, 6, {s(sT)}")
        k(f"v_lshl_add_u32 {v(vCr)}, {v(a)}, 4, {v(f)}")
        k(f"v_lshlrev_b32 {v(vRrd)}, 4, {v(vG)}")
        k(f"v_lshlrev_b32 {v(a)}, 8, {v(vG)}")
        k(f"v_lshl_add_u32 {v(a)}, {v(vN)}, 3, {v(a)}")
        k(f"s_mul_i32 {s(sT)}, {s(sW)}, 1088")
        k(f"s_add_u32 {s(sT)}, {s(sT)}, {T2}")
        k(f"v_add_u32 {v(vT2a)}, {s(sT)}, {v(a)}")
        k(f"s_sub_u32 {s(sT)}, 8, {s(sW)}")
        k(f"s_and_b32 {s(sT)}, {s(sT)}, 7")
        k(f"s_mul_i32 {s(sT)}, {s(sT)}, 1088")
        k(f"s_add_u32 {s(sT)}, {s(sT)}, {T2 + 4}")
        k(f"v_add_u32 {v(vT2b)}, {s(sT)}, {v(a)}")
        k(f"s_lshl_b32 {s(sT)}, {s(sW)}, 7")
        k(f"s_add_u32 {s(sT)}, {s(sT)}, {T2}")
        k(f"v_mul_u32_u24 {v(a)}, 1088, {v(vR)}")
        k(f"v_lshl_add_u32 {v(f)}, {v(vG)}, 2, {v(vC)}")
        k(f"v_add_u32 {v(a)}, {s(sT)}, {v(a)}")
        k(f"v_lshl_add_u32 {v(vT2r)}, {v(f)}, 3, {v(a)}")

    if not P["late_c1"]:
        stepc_addr(f, a)
    V.free(f), V.free(ph), V.free(a)
    s1, s2, s3, sw, o1, o2 = (V() for _ in range(6))
    for x in (s1, s2, s3, sw, o1, o2):
        k(f"v_mov_b32 {v(x)}, 0")
    stamp(lg, "consts")

    xo, xt = V(8), V(8)
    Af = [[V(4), V(4)], [V(4), V(4)]]
    vm.wait("own")
    stamp(lg, "x_in")
    lg.issue(f"ds_read_b128 {v(xo, 4)}, {v(vSo)}")
    lg.issue(f"ds_read_b128 {v(xo + 4, 4)}, {v(vSo)} offset:1024", "xo")
    wdma(sched.get("xin", 0))
    for j in range(8):
        k(f"v_dot2c_f32_bf16 {v(sw)}, 0x3f803f80, {v(vWr + j)}")
    lg.wait("xo")
    for j in range(8):
        k(f"v_dot2c_f32_bf16 {v(s1)}, 0x3f803f80, {v(xo + j)}")
        k(f"v_dot2c_f32_bf16 {v(s2)}, {v(xo + j)}, {v(xo + j)}")
        k(f"v_dot2c_f32_bf16 {v(s3)}, {v(xo + j)}, {v(vWr + j)}")
    k(f"v_permlane32_swap_b32 {v(s1)}, {v(s2)}")
    k(f"v_permlane32_swap_b32 {v(s3)}, {v(sw)}")
    k(f"v_add_f32 {v(s1)}, {v(s1)}, {v(s2)}")
    k(f"v_add_f32 {v(s3)}, {v(s3)}, {v(sw)}")
    k(f"v_permlane16_swap_b32 {v(s1)}, {v(s3)}")
    k(f"v_add_f32 {v(s1)}, {v(s1)}, {v(s3)}")
    for sh in (8, 4, 2, 1):
        k(f"v_add_f32_dpp {v(s1)}, {v(s1)}, {v(s1)} row_ror:{sh} row_mask:0xf bank_mask:0xf")
    q1, q2, q3, q4 = (S() for _ in range(4))
    k(f"v_readlane_b32 {s(q1)}, {v(s1)}, 0")
    k(f"v_readlane_b32 {s(q2)}, {v(s1)}, 32")
    k(f"v_readlane_b32 {s(q3)}, {v(s1)}, 16")
    k(f"v_readlane_b32 {s(q4)}, {v(s1)}, 48")
    mo, ro = V(), V()
    k(f"v_mul_f32 {v(mo)}, {s(q1)}, {v(vInv)}")
    k(f"v_mul_f32 {v(s2)}, {s(q2)}, {v(vInv)}")
    k(f"v_mov_b32 {v(s3)}, {s(q3)}")
    k(f"v_fma_f32 {v(s2)}, -{v(mo)}, {v(mo)}, {v(s2)}")
    k(f"v_fma_f32 {v(s3)}, -{v(mo)}, {s(q4)}, {v(s3)}")
    k(f"v_max_f32 {v(s2)}, 0, {v(s2)}")
    k(f"v_add_f32 {v(s2)}, {fl(1e-5)}, {v(s2)}")
    k(f"v_rsq_f32 {v(ro)}, {v(s2)}")
    k(f"v_mul_f32 {v(s3)}, {v(s3)}, {v(ro)}")
    k(f"v_ashrrev_i32 {v(s2)}, 31, {v(s3)}")
    k(f"v_or_b32 {v(s2)}, 0x80000000, {v(s2)}")
    k(f"v_xor_b32 {v(s2)}, {v(s3)}, {v(s2)}")
    k(f"v_and_b32 {v(s2)}, 0xfffff800, {v(s2)}")
    k(f"v_or_b32 {v(s2)}, {s(sOwn)}, {v(s2)}")
    k("s_mov_b64 exec, 1")
    lg.issue(f"ds_write2_b32 {v(vM1)}, {v(s2)}, {v(mo)} offset0:16 offset1:40")
    lg.issue(f"ds_write_b32 {v(vM2)}, {v(ro)}", "key")
    k("s_mov_b64 exec, -1")
    vm.wait("oth", "clr")
    lg.issue(f"ds_read_b128 {v(xt, 4)}, {v(vSt)}")
    lg.issue(f"ds_read_b128 {v(xt + 4, 4)}, {v(vSt)} offset:1024", "xt")
    for row in range(2):
        for half in range(2):
            for h in range(2):
                lg.issue(f"ds_read_b64_tr_b16 {v(Af[row][half] + 2 * h, 2)}, {v(vA1 if half else vA0)} offset:{row * 16384 + h * 256}", f"af{row}{half}")
    lg.wait("key")
    k("s_barrier")
    stamp(lg, "bar1")
    wdma(sched.get("bar1", 0))
    lg.wait("xt")
    for j in range(8):
        k(f"v_dot2c_f32_bf16 {v(o1)}, 0x3f803f80, {v(xt + j)}")
        k(f"v_dot2c_f32_bf16 {v(o2)}, {v(xt + j)}, {v(xt + j)}")
    k(f"v_permlane32_swap_b32 {v(o1)}, {v(o2)}")
    Ci = [V(4), V(4)]
    for j in range(4):
        k(f"v_mul_f32 {v(Ci[0] + j)}, {v(vMk)}, {v(mo)}")
    k(f"v_add_f32 {v(o1)}, {v(o1)}, {v(o2)}")
    k(f"v_mov_b32 {v(o2)}, {v(o1)}")
    Da = [[V(4), V(4)], [V(4), V(4)]]
    lg.wait("af01")
    k(f"v_mfma_f32_16x16x32_bf16 {v(Da[0][0], 4)}, {v(Af[0][0], 4)}, {v(vKA, 4)}, {v(Ci[0], 4)}")
    k(f"v_permlane16_swap_b32 {v(o1)}, {v(o2)}")
    k(f"v_mfma_f32_16x16x32_bf16 {v(Da[0][1], 4)}, {v(Af[0][1], 4)}, {v(vKA, 4)}, {v(Ci[0], 4)}")
    k(f"v_add_f32 {v(o1)}, {v(o1)}, {v(o2)}")
    for sh in (8, 4, 2, 1):
        k(f"v_add_f32_dpp {v(o1)}, {v(o1)}, {v(o1)} row_ror:{sh} row_mask:0xf bank_mask:0xf")
    k(f"v_readlane_b32 {s(q1)}, {v(o1)}, 0")
    k(f"v_readlane_b32 {s(q2)}, {v(o1)}, 32")
    pk = V(4)
    for half in range(2):
        for j in range(2):
            k(f"v_cvt_pk_bf16_f32 {v(pk + 2 * half + j)}, {v(Da[0][half] + 2 * j)}, {v(Da[0][half] + 2 * j + 1)}")
    k(f"v_mul_f32 {v(o1)}, {s(q1)}, {v(vInv)}")
    k(f"v_mul_f32 {v(o2)}, {s(q2)}, {v(vInv)}")
    lg.issue(f"ds_write_b128 {v(vTd)}, {v(pk, 4)}")
    for j in range(4):
        k(f"v_mul_f32 {v(Ci[1] + j)}, {v(vMk)}, {v(o1)}")
    k(f"v_fma_f32 {v(o2)}, -{v(o1)}, {v(o1)}, {v(o2)}")
    lg.wait("af11")
    k(f"v_mfma_f32_16x16x32_bf16 {v(Da[1][0], 4)}, {v(Af[1][0], 4)}, {v(vKA, 4)}, {v(Ci[1], 4)}")
    k(f"v_mfma_f32_16x16x32_bf16 {v(Da[1][1], 4)}, {v(Af[1][1], 4)}, {v(vKA, 4)}, {v(Ci[1], 4)}")
    k(f"v_max_f32 {v(o2)}, 0, {v(o2)}")
    k(f"v_add_f32 {v(o2)}, {fl(1e-5)}, {v(o2)}")
    k(f"v_rsq_f32 {v(o2)}, {v(o2)}")
    k(f"v_xor_b32 {v(vM2)}, 32, {v(vM2)}")
    k("s_mov_b64 exec, 1")
    lg.issue(f"ds_write_b32 {v(vM2)}, {v(o2)}")
    k("s_mov_b64 exec, -1")
    pk2 = V(4)
    for half in range(2):
        for j in range(2):
            k(f"v_cvt_pk_bf16_f32 {v(pk2 + 2 * half + j)}, {v(Da[1][half] + 2 * j)}, {v(Da[1][half] + 2 * j + 1)}")
    lg.issue(f"ds_write_b128 {v(vTp)}, {v(pk2, 4)} offset:512")
    if P["late_c1"]:
        stepc_addr(s1, s2)
        stepc_consts(1, s1, s2, xo)
    lg.all()
    k("s_barrier")
    stamp(lg, "bar1b")
    for x in (s1, s2, s3, sw, o1, o2, mo, ro, vMk, vSo, vSt, vA0, vA1, vTd, vTp, vM1, vM2, vG4f, vInv):
        V.free(x)
    for x in (xo, xt, vWr):
        V.free(x, 8)
    for x in (Af[0][0], Af[0][1], Af[1][0], Af[1][1], Da[0][0], Da[0][1], Da[1][0], Da[1][1], Ci[0], Ci[1], pk, pk2, vKA):
        V.free(x, 4)

    Ar, Ai, Rs = V(4), V(4), V(4)
    lg.issue(f"ds_read_b128 {v(Ar, 4)}, {v(vCr)}", "ar")
    lg.issue(f"ds_read_b128 {v(Ai, 4)}, {v(vCr)} offset:1040", "ai")
    lg.issue(f"ds_read_b128 {v(Rs, 4)}, {v(vRrd)} offset:{M_RS}", "rs")
    wdma(sched.get("bar1b", 0))
    Xr0, Xi0, Xr1, Xi1 = (V(4) for _ in range(4))

    def mf(d, a_, b_, c_=None):
        k(f"v_mfma_f32_16x16x32_bf16 {v(d, 4)}, {v(a_, 4)}, {v(b_, 4)}, {v(c_, 4) if c_ is not None else 0}")

    lg.wait("ai")
    k(f"s_cmp_eq_u32 {s(sE1)}, 0")
    k("s_cbranch_scc1 SPECC")
    mf(Xr0, Ar, vC0), mf(Xi0, Ar, vNS0), mf(Xr1, Ar, vC1), mf(Xi1, Ar, vS1)
    mf(Xr0, Ai, vS0, Xr0), mf(Xi0, Ai, vC0, Xi0), mf(Xr1, Ai, vS1, Xr1), mf(Xi1, Ai, vNC1, Xi1)
    k("SPECD:")
    lg.wait("rs")
    for j in range(8):
        k(f"v_mul_f32 {v(vBf + j)}, {v(vBf + j)}, {v(Rs + (j & 3))}")
    Bq, B0, B1 = V(4), V(4), V(4)
    for j in range(4):
        k(f"v_cvt_pk_bf16_f32 {v(Bq + j)}, {v(vBf + 2 * j)}, {v(vBf + 2 * j + 1)}")
    for dst, xr, xi in ((B0, Xr0, Xi0), (B1, Xr1, Xi1)):
        for j in range(2):
            k(f"v_cvt_pk_bf16_f32 {v(dst + j)}, {v(xr + 2 * j)}, {v(xr + 2 * j + 1)}")
        for j in range(2):
            k(f"v_cvt_pk_bf16_f32 {v(dst + 2 + j)}, {v(xi + 2 * j)}, {v(xi + 2 * j + 1)}")
        mf(Ar if dst == B0 else Ai, Bq, dst)
    for dst, src, adr in ((B0, Ar, vT2a), (B1, Ai, vT2b)):
        k(f"v_cvt_pk_bf16_f32 {v(dst)}, {v(src)}, {v(src + 1)}")
        k(f"v_cvt_pk_bf16_f32 {v(dst + 1)}, {v(src + 2)}, {v(src + 3)}")
        lg.issue(f"ds_write2_b32 {v(adr)}, {v(dst)}, {v(dst + 1)} offset1:32")
    lg.all()
    k("s_barrier")
    lg.issue(f"ds_read_b64_tr_b16 {v(Bq, 2)}, {v(vT2r)}")
    lg.issue(f"ds_read_b64_tr_b16 {v(Bq + 2, 2)}, {v(vT2r)} offset:4352")
    sBlk, sHalf, sUt, sUe = (S() for _ in range(4))
    vT, vTm, vOd, vOm, vSd, vSm = (V() for _ in range(6))
    a, b = V(), V()
    k(f"s_and_b32 {s(sBlk)}, {s(sU)}, 15")
    k(f"s_lshr_b32 {s(sHalf)}, {s(sU)}, 4")
    k(f"s_lshl3_add_u32 {s(sT)}, {s(sHalf)}, {s(sW)}")
    k(f"s_lshl_b32 {s(sT)}, {s(sT)}, 7")
    k(f"s_add_u32 {s(sT)}, {s(sT)}, {s(sX8)}")
    k(f"v_lshl_add_u32 {v(vT)}, {v(vN)}, 3, {s(sT)}")
    k(f"v_sub_u32 {v(vTm)}, 2048, {v(vT)}")
    k(f"v_and_b32 {v(vTm)}, 2047, {v(vTm)}")
    lg.all()
    vm.issue(f"buffer_store_dwordx4 {v(Bq, 4)}, {v(vUs)}, {WS}, {s(sUs)} offen sc1")
    stamp(lg, "ust")
    page_pad()
    k(f"s_lshl_b32 {s(sT)}, {s(sBlk)}, 6")
    k(f"v_lshl_add_u32 {v(a)}, {v(vG)}, 4, {s(sT)}")
    k(f"v_lshl_add_u32 {v(vOd)}, {v(vT)}, 11, {v(a)}")
    k(f"v_sub_u32 {v(a)}, 2032, {v(a)}")
    k(f"v_lshl_add_u32 {v(vOm)}, {v(vTm)}, 11, {v(a)}")
    xd, xm = V(4), V(4)
    vm.issue(f"buffer_load_dwordx4 {v(xd, 4)}, {v(vOd)}, {X}, 0 offen")
    vm.issue(f"buffer_load_dwordx4 {v(xm, 4)}, {v(vOm)}, {X}, 0 offen", "res")
    wdma(sched.get("ust", 0))
    for x in (q1, q2, q3, q4, sOwn, sOth, sLo, sE1, sE2, sUs):
        S.free(x)
    specc = (Ar, Ai, Xr0, Xi0, Xr1, Xi1, vC0, vNS0, vC1, vS1)
    for x in (Ar, Ai, Rs, Xr0, Xi0, Xr1, Xi1, B0, B1, vC0, vS0, vNS0, vC1, vS1, vNC1):
        V.free(x, 4)
    V.free(vBf, 8)
    for x in (vCr, vT2a, vT2b, vT2r, vRrd):
        V.free(x)
    for dst, src in ((vSd, vT), (vSm, vTm)):
        k(f"v_and_b32 {v(a)}, 7, {v(src)}")
        k(f"v_and_b32 {v(b)}, 0x7f8, {v(src)}")
        k(f"v_lshl_add_u32 {v(dst)}, {v(a)}, 11, {v(b)}")

    K2 = V(32)
    f, f4, f16 = V(), V(), V()
    arg = V(4)
    tc = V(4)
    k(f"v_cvt_f32_u32 {v(f)}, {v(vT)}")
    k(f"v_lshrrev_b32 {v(a)}, 5, {v(vL)}")
    k(f"v_lshlrev_b32 {v(b)}, 1, {v(vG1)}")
    k(f"v_lshl_add_u32 {v(a)}, {v(a)}, 3, {v(b)}")
    k(f"v_mul_f32 {v(f)}, {fl(1 / 2048)}, {v(f)}")
    k(f"v_cvt_f32_u32 {v(a)}, {v(a)}")
    k(f"v_mul_f32 {v(f16)}, {fl(16.0)}, {v(f)}")
    k(f"v_mul_f32 {v(arg)}, {v(f)}, {v(a)}")
    k(f"v_add_f32 {v(arg + 1)}, {v(arg)}, {v(f)}")
    k(f"v_fma_f32 {v(arg + 2)}, {v(f)}, 4.0, {v(arg)}")
    k(f"v_fma_f32 {v(arg + 3)}, {v(f)}, 4.0, {v(arg + 1)}")
    c2 = sched.get("c2", 0)
    c2at = [round((i + 1) * 8 / (c2 + 1)) for i in range(c2)]
    for ks in range(8):
        for j in range(4):
            k(f"v_cos_f32 {v(tc + j)}, {v(arg + j)}")
            k(f"v_sin_f32 {v(K2 + 4 * ks + j)}, {v(arg + j)}")
        for j in range(4):
            if ks < 7:
                k(f"v_add_f32 {v(arg + j)}, {v(arg + j)}, {v(f16)}")
            k(f"v_cvt_pk_bf16_f32 {v(K2 + 4 * ks + j)}, {v(tc + j)}, {v(K2 + 4 * ks + j)}")
        wdma(c2at.count(ks + 1))
    k(f"v_and_b32 {v(a)}, 1, {v(vN)}")
    k(f"v_lshlrev_b32 {v(a)}, 31, {v(a)}")
    k(f"v_or_b32 {v(a)}, 0x3f803f80, {v(a)}")
    k(f"v_cmp_gt_u32 vcc, 16, {v(vL)}")
    k(f"v_cndmask_b32 {v(K2)}, {v(K2)}, {v(a)}, vcc")
    for x in (f, f4, f16):
        V.free(x)
    V.free(arg, 4), V.free(tc, 4), V.free(Bq, 4), V.free(vUs)

    vUo, vUe, vIa, vIb, vIe, vIr, vSa, vSb = (V() for _ in range(8))
    k(f"s_lshl_b32 {s(sT)}, {s(sX8)}, 18")
    k(f"s_lshl_b32 {s(sT2)}, {s(sW)}, 11")
    k(f"s_add_u32 {s(sT)}, {s(sT)}, {s(sT2)}")
    k(f"s_lshl_b32 {s(sUt)}, {s(sBlk)}, 14")
    k(f"s_add_u32 {s(sUt)}, {s(sUt)}, {s(sT)}")
    k(f"s_add_u32 {s(sUe)}, {s(sBlk)}, 1")
    k(f"s_and_b32 {s(sUe)}, {s(sUe)}, 15")
    k(f"s_lshl_b32 {s(sUe)}, {s(sUe)}, 14")
    k(f"s_add_u32 {s(sUe)}, {s(sUe)}, {s(sT)}")
    ql, l1, tt = V(), V(), V()
    k(f"v_lshrrev_b32 {v(ql)}, 2, {v(vL)}")
    k(f"v_and_b32 {v(l1)}, 1, {v(vL)}")
    k(f"v_bfe_u32 {v(tt)}, {v(vL)}, 1, 1")
    k(f"v_lshlrev_b32 {v(a)}, 7, {v(ql)}")
    k(f"v_lshl_add_u32 {v(vUo)}, {v(vC)}, 4, {v(a)}")
    k(f"v_lshl_add_u32 {v(vUe)}, {v(l1)}, 4, {v(a)}")
    k(f"s_mul_i32 {s(sT)}, {s(sW)}, {32 * 96}")
    k(f"v_lshl_add_u32 {v(a)}, {v(ql)}, 1, {v(l1)}")
    k(f"v_mul_u32_u24 {v(a)}, 96, {v(a)}")
    k(f"v_add_u32 {v(vIe)}, {s(sT)}, {v(a)}")
    k(f"v_mad_u32_u24 {v(vIa)}, {v(tt)}, 24, {v(vIe)}")
    k(f"v_lshl_add_u32 {v(vIb)}, {v(tt)}, 3, {v(vIe)}")
    k(f"v_lshrrev_b32 {v(a)}, 5, {v(vL)}")
    k(f"v_lshl_add_u32 {v(b)}, {v(vG1)}, 2, {v(vR)}")
    k(f"v_lshl_add_u32 {v(a)}, {v(a)}, 4, {v(b)}")
    k(f"v_mul_u32_u24 {v(a)}, 96, {v(a)}")
    k(f"v_lshl_add_u32 {v(vIr)}, {v(vC)}, 3, {v(a)}")
    k(f"s_cmp_eq_u32 {s(sBlk)}, 0")
    k(f"s_cselect_b32 {s(sT)}, 0x0908, 0")
    k(f"s_xor_b32 {s(sT)}, {s(sT)}, 0x07060504")
    k(f"v_cmp_eq_u32 vcc, 1, {v(tt)}")
    k(f"v_mov_b32 {v(a)}, 0x07060100")
    k(f"v_mov_b32 {v(vSb)}, 0x07060504")
    k(f"v_mov_b32 {v(vSa)}, {s(sT)}")
    k(f"v_cndmask_b32 {v(vSb)}, {v(vSb)}, {v(a)}, vcc")
    k(f"v_cndmask_b32 {v(vSa)}, {v(vSa)}, {v(a)}, vcc")
    vGU, vDn, vHw, vHr, vPo, vL16 = (V() for _ in range(6))
    sHw, sHr, sPo, sSt, sCnt = (S() for _ in range(5))
    sN2 = S(2)
    k(f"v_lshrrev_b32 {v(a)}, 1, {v(vR)}")
    k(f"v_lshl_add_u32 {v(a)}, {v(vG1)}, 1, {v(a)}")
    k(f"v_lshlrev_b32 {v(b)}, 10, {v(vG)}")
    k(f"v_lshl_add_u32 {v(b)}, {v(vR)}, 7, {v(b)}")
    k(f"v_lshl_add_u32 {v(b)}, {v(vC)}, 3, {v(b)}")
    k(f"v_lshl_add_u32 {v(b)}, {v(a)}, 5, {v(b)}")
    k(f"s_add_u32 {s(sT)}, {s(sWm)}, 65536")
    k(f"v_add_u32 {v(vDn)}, {s(sT)}, {v(b)}")
    k(f"s_and_b32 {s(sT)}, {s(sW)}, 3")
    k(f"s_lshl_b32 {s(sT)}, {s(sT)}, 5")
    k(f"v_xor_b32 {v(b)}, {s(sT)}, {v(b)}")
    k(f"s_lshr_b32 {s(sT2)}, {s(sW)}, 2")
    k(f"s_lshl_b32 {s(sT)}, {s(sT2)}, 15")
    k(f"s_add_u32 {s(sT)}, {s(sT)}, {WBASE}")
    k(f"v_add_u32 {v(vGU)}, {s(sT)}, {v(b)}")
    k(f"v_lshlrev_b32 {v(a)}, 4, {v(l1)}")
    k(f"v_lshl_add_u32 {v(vHw)}, {v(vG)}, 5, {v(a)}")
    k(f"s_lshl_b32 {s(sHr)}, {s(sCb)}, 12")
    k(f"s_add_u32 {s(sHr)}, {s(sHr)}, {W_HX}")
    k(f"s_lshl_b32 {s(sT)}, {s(sPart)}, 9")
    k(f"s_add_u32 {s(sHw)}, {s(sHr)}, {s(sT)}")
    k(f"s_lshl_b32 {s(sT)}, {s(sT2)}, 8")
    k(f"s_add_u32 {s(sHw)}, {s(sHw)}, {s(sT)}")
    k(f"s_bfe_u32 {s(sT)}, {s(sW)}, 0x10001")
    k(f"s_lshl_b32 {s(sT)}, {s(sT)}, 11")
    k(f"s_add_u32 {s(sHw)}, {s(sHw)}, {s(sT)}")
    k(f"s_and_b32 {s(sT)}, {s(sW)}, 1")
    k(f"s_lshl_b32 {s(sT)}, {s(sT)}, 7")
    k(f"s_add_u32 {s(sHw)}, {s(sHw)}, {s(sT)}")
    k("s_cmp_lt_u32 s2, 224")
    k(f"s_cselect_b32 {s(sHw)}, {s(sHw)}, {OOB}")
    k(f"s_lshl_b32 {s(sT)}, {s(sT2)}, 11")
    k(f"s_add_u32 {s(sHr)}, {s(sHr)}, {s(sT)}")
    k(f"v_lshl_add_u32 {v(a)}, {v(tt)}, 8, {v(a)}")
    k(f"v_lshl_add_u32 {v(a)}, {v(vG)}, 6, {v(a)}")
    k(f"v_and_b32 {v(b)}, 1, {v(vR)}")
    k(f"v_lshl_add_u32 {v(a)}, {v(b)}, 5, {v(a)}")
    k(f"v_lshrrev_b32 {v(b)}, 1, {v(vR)}")
    k(f"v_lshl_add_u32 {v(vHr)}, {v(b)}, 10, {v(a)}")
    k(f"v_mul_u32_u24 {v(a)}, {32 * 7168}, {v(l1)}")
    k(f"v_lshl_add_u32 {v(a)}, {v(vG1)}, 5, {v(a)}")
    k(f"v_lshrrev_b32 {v(b)}, 5, {v(vL)}")
    k(f"v_lshl_add_u32 {v(vPo)}, {v(b)}, 4, {v(a)}")
    k(f"s_and_b32 {s(sT)}, {s(sW)}, 3")
    k(f"s_lshl2_add_u32 {s(sT)}, {s(sPart)}, {s(sT)}")
    k(f"s_mul_i32 {s(sPo)}, {s(sT)}, {2 * 7168}")
    k(f"s_lshl1_add_u32 {s(sT)}, {s(sCb)}, {s(sT2)}")
    k(f"s_lshl_b32 {s(sT)}, {s(sT)}, 6")
    k(f"s_add_u32 {s(sPo)}, {s(sPo)}, {s(sT)}")
    k(f"s_add_u32 {s(sPo)}, {s(sPo)}, {W_PART}")
    k(f"v_lshlrev_b32 {v(vL16)}, 4, {v(vL)}")
    V.free(ql), V.free(l1), V.free(tt)
    S.free(sBlk), S.free(sHalf)
    k(f"s_mov_b32 {s(sN2)}, 0x00030003")
    k(f"s_mov_b32 {s(sN2 + 1)}, 0x00030003")
    k(f"s_mov_b32 {s(sSt)}, {W_STATS}")
    k(f"s_mov_b32 {s(sCnt)}, 0")
    for x in (sSl, sRP, sQ, sHF, sU, sX8, sPart, sCb):
        S.free(x)
    wdma(sched.get("pre3", 0))
    vd, vmr = V(8), V(8)
    vm.wait("res")
    for dst, src in ((vd, xd), (vmr, xm)):
        for j in range(4):
            k(f"v_lshlrev_b32 {v(dst + 2 * j)}, 16, {v(src + j)}")
            k(f"v_and_b32 {v(dst + 2 * j + 1)}, 0xffff0000, {v(src + j)}")
    V.free(xd, 4), V.free(xm, 4)
    if P["merge3"]:
        wdma(8, "gu")
        vm.wait("g3", "u3")
    stamp(lg, "pre3")
    lg.all()
    k("s_barrier")
    stamp(lg, "bar3")

    UA, UB, UE, Sd, Sm, rows = V(4), V(4), V(), V(2), V(2), V(2)
    xb = V(32)

    def tile_loads(issue, tag=None):
        issue(f"buffer_load_dwordx4 {v(UA, 4)}, {v(vUo)}, {WS}, {s(sUt)} offen sc1")
        issue(f"buffer_load_dwordx4 {v(UB, 4)}, {v(vUo)}, {WS}, {s(sUt)} offen offset:64 sc1")
        issue(f"buffer_load_dword {v(UE)}, {v(vUe)}, {WS}, {s(sUe)} offen sc1")
        issue(f"buffer_load_dwordx2 {v(Sd, 2)}, {v(vSd)}, {WS}, {s(sSt)} offen sc1")
        last = f"buffer_load_dwordx2 {v(Sm, 2)}, {v(vSm)}, {WS}, {s(sSt)} offen sc1"
        issue(last, tag) if tag else issue(last)

    lg.issue(f"ds_read_b128 {v(xb, 4)}, {v(vL16)} offset:{M_XN}", "xb")
    k(f"v_mov_b32 {v(a)}, 0")
    lg.issue(f"ds_read_b64 {v(rows, 2)}, {v(a)} offset:{M_SEL}", "rows")
    wdma(8, "gu")
    tile_loads(vm.issue, "tile")
    wdma(sched.get("sel", 0))
    lg.wait("xb")
    for ks in range(1, 8):
        for j in range(4):
            k(f"v_mov_b32_dpp {v(xb + 4 * ks + j)}, {v(xb + j)} row_shl:{2 * ks} row_mask:0xf bank_mask:0xf")
    V.free(vL16)

    Wf = [V(4) for _ in range(4)]
    aG = [V(4), V(4)]
    if not P["merge3"]:
        vm.wait("g3", "u3")
        k("s_barrier")
    stamp(lg, "gu_in")

    def gureads(ks):
        for hj in range(2):
            lg.issue(f"ds_read_b64_tr_b16 {v(Wf[ks & 3] + 2 * hj, 2)}, {v(vGU)} offset:{ks * 4096 + hj * 512}", f"w{ks}")

    for ks in range(4):
        gureads(ks)
    sd0, sm0, sm1 = (S(2) for _ in range(3))
    vFd, vFm = vT, vTm
    fill = [
        f"v_cmp_eq_u32 {s(sd0, 2)}, {v(vT)}, {v(rows)}",
        f"v_cmp_eq_u32 vcc, {v(vT)}, {v(rows + 1)}",
        f"v_cmp_eq_u32 {s(sm0, 2)}, {v(vTm)}, {v(rows)}",
        f"v_cmp_eq_u32 {s(sm1, 2)}, {v(vTm)}, {v(rows + 1)}",
        f"v_bfrev_b32 {v(a)}, 1",
        f"v_lshlrev_b32 {v(b)}, 5, {v(vG)}",
        f"v_cndmask_b32 {v(vFd)}, 0, 64, vcc",
        f"v_cndmask_b32 {v(vFm)}, 0, 64, {s(sm1, 2)}",
        f"s_or_b64 {s(sd0, 2)}, {s(sd0, 2)}, vcc",
        f"s_or_b64 {s(sm0, 2)}, {s(sm0, 2)}, {s(sm1, 2)}",
        f"v_lshl_add_u32 {v(vFd)}, {v(vFd)}, 1, {v(b)}",
        f"v_sub_u32 {v(b)}, 96, {v(b)}",
        f"v_lshl_add_u32 {v(vFm)}, {v(vFm)}, 1, {v(b)}",
        f"v_cndmask_b32 {v(vOd)}, {v(vOd)}, {v(a)}, {s(sd0, 2)}",
        f"v_cndmask_b32 {v(vOm)}, {v(vOm)}, {v(a)}, {s(sm0, 2)}",
    ]
    for x in fill[:8]:
        k(x)
    for ks in range(8):
        lg.wait(f"w{ks}")
        mf(aG[ks & 1], Wf[ks & 3], xb + 4 * ks, aG[ks & 1] if ks > 1 else None)
        if ks + 4 < 8:
            gureads(ks + 4)
    for x in fill[8:]:
        k(x)
    for j in range(4):
        k(f"v_add_f32 {v(aG[0] + j)}, {v(aG[0] + j)}, {v(aG[1] + j)}")
    k(f"s_mov_b64 exec, {s(sN2, 2)}")
    vm.issue(f"buffer_store_dwordx4 {v(aG[0], 4)}, {v(vHw)}, {WS}, {s(sHw)} offen sc1")
    k("s_mov_b64 exec, -1")
    stamp(lg, "gu")
    wdma(sched.get("gu", 0))
    S.free(sm1, 2)
    V.free(rows, 2), V.free(xb, 32), V.free(vHw), V.free(vGU)
    for x in Wf + [aG[1]]:
        V.free(x, 4)

    vm.wait("tile")
    k("UCHK:")
    k(f"v_max3_u32 {v(a)}, {v(UA)}, {v(UA + 1)}, {v(UA + 2)}")
    k(f"v_max3_u32 {v(b)}, {v(UB)}, {v(UB + 1)}, {v(UB + 2)}")
    k(f"v_max3_u32 {v(a)}, {v(a)}, {v(UA + 3)}, {v(UB + 3)}")
    k(f"v_max3_u32 {v(b)}, {v(b)}, {v(UE)}, {v(Sd)}")
    k(f"v_max3_u32 {v(a)}, {v(a)}, {v(Sd + 1)}, {v(Sm)}")
    k(f"v_max3_u32 {v(a)}, {v(a)}, {v(b)}, {v(Sm + 1)}")
    k(f"v_cmp_eq_u32 vcc, -1, {v(a)}")
    k("s_cbranch_vccnz URETRY")
    k("UOK:")
    stamp(lg, "tile")
    k(f"v_perm_b32 {v(a)}, {v(UA)}, {v(UB)}, {v(vSa)}")
    k(f"v_perm_b32 {v(UB)}, {v(UB)}, {v(UA)}, {v(vSb)}")
    lg.issue(f"ds_write_b32 {v(vIe)}, {v(UE)} offset:32")
    k(f"v_mov_b32 {v(UA)}, {v(a)}")
    lg.issue(f"ds_write_b64 {v(vIa)}, {v(UA + 2, 2)} offset:40")
    lg.issue(f"ds_write_b64 {v(vIb)}, {v(UB + 2, 2)} offset:48")
    lg.issue(f"ds_write_b64 {v(vIb)}, {v(UB, 2)} offset:8")
    lg.issue(f"ds_write_b64 {v(vIa)}, {v(UA, 2)}")
    for st, xx in ((Sd, vd), (Sm, vmr)):
        k(f"v_mul_f32 {v(st + 1)}, -{v(st)}, {v(st + 1)}")
        k(f"v_add_f32 {v(st)}, 1.0, {v(st)}")
    for st, xx in ((Sd, vd), (Sm, vmr)):
        for j in range(8):
            k(f"v_fma_f32 {v(xx + j)}, {v(xx + j)}, {v(st)}, {v(st + 1)}")
    V.free(aG[0], 4)
    lg.all()
    k("s_barrier")
    stamp(lg, "bar5")
    page_pad()
    V.free(UA, 4), V.free(UB, 4), V.free(UE), V.free(Sd, 2), V.free(Sm, 2)

    acc = [V(4), V(4), V(4)]
    fr = [[V(4), V(4), V(4)], [V(4), V(4), V(4)]]
    H0, H1 = V(4), V(4)

    def s2reads(ks):
        for m, off in enumerate((0, 40, 8)):
            for rd in range(2):
                lg.issue(f"ds_read_b64_tr_b16 {v(fr[ks & 1][m] + 2 * rd, 2)}, {v(vIr)} offset:{ks * 3072 + rd * 768 + off}", f"s2_{ks}_{m}")

    def hx_loads(issue, tag=None):
        issue(f"buffer_load_dwordx4 {v(H0, 4)}, {v(vHr)}, {WS}, {s(sHr)} offen sc1")
        last = f"buffer_load_dwordx4 {v(H1, 4)}, {v(vHr)}, {WS}, {s(sHr)} offen offset:512 sc1"
        issue(last, tag) if tag else issue(last)

    s2reads(0), s2reads(1)
    hx_at = P.get("hx_at", 4)
    for ks in range(8):
        if ks == hx_at:
            wdma(12)
            hx_loads(vm.issue, "hx")
        for m in range(3):
            lg.wait(f"s2_{ks}_{m}")
            mf(acc[m], fr[ks & 1][m], K2 + 4 * ks, acc[m] if ks else None)
        if ks + 2 < 8:
            s2reads(ks + 2)
        wdma(sched.get(f"s2_{ks}", 0))
    if hx_at >= 8:
        wdma(12)
        hx_loads(vm.issue, "hx")
    for j in range(4):
        k(f"v_add_f32 {v(vd + j)}, {v(vd + j)}, {v(acc[0] + j)}")
    for j in range(3):
        k(f"v_add_f32 {v(vmr + 5 + j)}, {v(vmr + 5 + j)}, {v(acc[0] + 3 - j)}")
    for j in range(4):
        k(f"v_add_f32 {v(vd + 4 + j)}, {v(vd + 4 + j)}, {v(acc[1] + j)}")
        k(f"v_add_f32 {v(vmr + 1 + j)}, {v(vmr + 1 + j)}, {v(acc[1] + 3 - j)}")
    k(f"v_add_f32 {v(vmr)}, {v(vmr)}, {v(acc[2])}")
    od, om = fr[0][0], fr[0][1]
    for dst, src in ((od, vd), (om, vmr)):
        for j in range(4):
            k(f"v_cvt_pk_bf16_f32 {v(dst + j)}, {v(src + 2 * j)}, {v(src + 2 * j + 1)}")
    k(f"s_or_b64 vcc, {s(sd0, 2)}, {s(sm0, 2)}")
    k("s_cbranch_scc1 FINW")
    k("FIND:")
    stamp(lg, "s2done")
    V.free(K2, 32)
    for x in acc + fr[1] + [fr[0][2]]:
        V.free(x, 4)
    k("s_cmp_ge_u32 s2, 224")
    k("s_cbranch_scc1 COUT")

    Dn = [V(4) for _ in range(4)]
    Dd = [V(4) for _ in range(4)]
    e, gq, Bh = V(4), V(4), V(4)
    t3 = V(4)
    sNan = S(2)
    for ct in range(1, 4):
        k(f"v_xor_b32 {v(t3 + ct)}, {ct * 32}, {v(vDn)}")
    vm.wait("d3")
    for ct in range(4):
        for hj in range(2):
            lg.issue(f"ds_read_b64_tr_b16 {v(Dn[ct] + 2 * hj, 2)}, {v(t3 + ct if ct else vDn)} offset:{hj * 512}", f"dn{ct}")
    k(f"s_mov_b32 {s(sCnt)}, 0")
    vm.wait("hx")
    k("HCHK:")
    for j in range(4):
        k(f"v_add_f32 {v(H0 + j)}, {v(H0 + j)}, {v(H1 + j)}")
    for j in range(4):
        k(f"v_add_f32_dpp {v(H0 + j)}, {v(H0 + j)}, {v(H0 + j)} row_ror:8 row_mask:0xf bank_mask:0xf")
    k(f"v_cmp_u_f32 vcc, {v(H0)}, {v(H0 + 1)}")
    k(f"v_cmp_u_f32 {s(sNan, 2)}, {v(H0 + 2)}, {v(H0 + 3)}")
    for j in range(4):
        k(f"v_mov_b32_dpp {v(gq + j)}, {v(H0 + j)} quad_perm:[0,1,0,1] row_mask:0xf bank_mask:0xf")
    k(f"s_or_b64 vcc, vcc, {s(sNan, 2)}")
    k("s_cbranch_scc1 HRETRY")
    k("HOK:")
    stamp(lg, "hx")
    for j in range(4):
        k(f"v_mul_f32 {v(e + j)}, {fl(-1.4426950408889634)}, {v(gq + j)}")
    for j in range(4):
        k(f"v_exp_f32 {v(e + j)}, {v(e + j)}")
        k(f"v_mul_f32_dpp {v(gq + j)}, {v(H0 + j)}, {v(gq + j)} quad_perm:[2,3,2,3] row_mask:0xf bank_mask:0xf")
    for j in range(4):
        k(f"v_add_f32 {v(e + j)}, 1.0, {v(e + j)}")
    for j in range(4):
        k(f"v_rcp_f32 {v(e + j)}, {v(e + j)}")
    for j in range(4):
        k(f"v_mul_f32 {v(gq + j)}, {v(gq + j)}, {v(e + j)}")
    k(f"v_cvt_pk_bf16_f32 {v(Bh)}, {v(gq)}, {v(gq + 1)}")
    k(f"v_cvt_pk_bf16_f32 {v(Bh + 1)}, {v(gq + 2)}, {v(gq + 3)}")
    k(f"s_add_u32 {s(sHr)}, {s(sPo)}, 7168")
    k(f"v_mov_b32_dpp {v(Bh + 2)}, {v(Bh)} row_shl:4 row_mask:0xf bank_mask:0xf")
    k(f"v_mov_b32_dpp {v(Bh + 3)}, {v(Bh + 1)} row_shl:4 row_mask:0xf bank_mask:0xf")
    for ct in range(4):
        lg.wait(f"dn{ct}")
        mf(Dd[ct], Dn[ct], Bh)
    for pr, Q4, so in ((0, e, sPo), (1, gq, sHr)):
        A_, B_ = Dd[2 * pr], Dd[2 * pr + 1]
        k(f"v_cvt_pk_bf16_f32 {v(Q4)}, {v(A_)}, {v(A_ + 1)}")
        k(f"v_cvt_pk_bf16_f32 {v(Q4 + 1)}, {v(A_ + 2)}, {v(A_ + 3)}")
        k(f"v_cvt_pk_bf16_f32 {v(Q4 + 2)}, {v(B_)}, {v(B_ + 1)}")
        k(f"v_cvt_pk_bf16_f32 {v(Q4 + 3)}, {v(B_ + 2)}, {v(B_ + 3)}")
        k(f"v_permlane16_swap_b32 {v(Q4)}, {v(Q4 + 2)}")
        k(f"v_permlane16_swap_b32 {v(Q4 + 1)}, {v(Q4 + 3)}")
        k(f"s_mov_b64 exec, {s(sN2, 2)}")
        vm.issue(f"buffer_store_dwordx4 {v(Q4, 4)}, {v(vPo)}, {WS}, {s(so)} offen sc1")
        k("s_mov_b64 exec, -1")
    stamp(lg, "pst")
    k("COUT:")
    for src, adr in ((od, vOd), (om, vOm)):
        k(f"buffer_store_dwordx4 {v(src, 4)}, {v(adr)}, {OUT}, 0 offen{P['outflag']}")
    if prof:
        stamp_flush(lg, sW, stamps)
    prof_names = {"compute": list(stamps)}
    k("END:")
    k("s_endpgm")

    k("BFQ0:")
    f, ph, a_, dc = bfq0
    k(f"v_lshrrev_b32 {v(a_)}, 5, {v(vL)}")
    k(f"v_cmp_eq_u32 s[100:101], {v(a_)}, {v(ph)}")
    k(f"v_mul_f32 {v(ph)}, {fl(7.5)}, {v(f)}")
    k(f"v_cndmask_b32 {v(ph)}, {v(ph)}, 0, vcc")
    k(f"v_cndmask_b32 {v(f)}, -{v(f)}, {v(f)}, vcc")
    k(f"v_cndmask_b32 {v(ph)}, -{v(dc)}, {v(ph)}, s[100:101]")
    k(f"v_cndmask_b32 {v(f)}, 0, {v(f)}, s[100:101]")
    k(f"v_cndmask_b32 {v(dc)}, 0, {v(dc)}, s[100:101]")
    k("s_branch BFGO")
    k("SPECC:")
    Ar, Ai, Xr0, Xi0, Xr1, Xi1, vC0, vNS0, vC1, vS1 = specc
    mf(Xr0, Ar, vC0), mf(Xi0, Ar, vNS0), mf(Xr1, Ai, vC1), mf(Xi1, Ai, vS1)
    k("s_branch SPECD")
    k("URETRY:")
    k(f"s_add_u32 {s(sCnt)}, {s(sCnt)}, 1")
    k(f"s_cmp_ge_u32 {s(sCnt)}, {SPIN}")
    k("s_cbranch_scc1 UOK")
    tile_loads(k)
    k("s_waitcnt vmcnt(0)")
    k("s_branch UCHK")
    k("HRETRY:")
    k(f"s_add_u32 {s(sCnt)}, {s(sCnt)}, 1")
    k(f"s_cmp_ge_u32 {s(sCnt)}, {SPIN}")
    k("s_cbranch_scc1 HOK")
    hx_loads(k)
    k("s_waitcnt vmcnt(0)")
    k("s_branch HCHK")
    k("FINW:")
    for msk, adr, src, off in ((sd0, vFd, vd, M_FIN), (sm0, vFm, vmr, M_FIN + 256)):
        k(f"s_mov_b64 exec, {s(msk, 2)}")
        k(f"ds_write_b128 {v(adr)}, {v(src, 4)} offset:{off}")
        k(f"ds_write_b128 {v(adr)}, {v(src + 4, 4)} offset:{off + 16}")
    k("s_mov_b64 exec, -1")
    k("s_waitcnt lgkmcnt(0)")
    k("s_branch FIND")
    vtop = V.top
    assert not S.busy[100] and not S.busy[101] and S.top <= 100

    V.busy, S.busy, stamps[:] = list(common[0]), list(common[1]), list(common[2])
    vm, lg = Counter(k, "vmcnt", 63), Counter(k, "lgkmcnt", 15)
    k("COMM:")
    k("s_setprio 3")
    G = V(4)
    M1 = V(4)
    vZ, a, b, vSo, vGo, vL16, vXo, vRm, vL4 = (V() for _ in range(9))
    sEp, sSt, sGp, sGr, sCnt, sCb, sPart = (S() for _ in range(7))
    sNo, sK, sC, sOk, sOdd = (S(2) for _ in range(5))
    k(f"v_mov_b32 {v(vZ)}, 0")
    k(f"s_mov_b32 {s(sEp)}, {W_EPOCH}")
    for j in range(4):
        k(f"v_mov_b32 {v(M1 + j)}, -1")
    k(f"s_lshr_b32 {s(sCb)}, {s(sSl)}, 2")
    k(f"s_and_b32 {s(sPart)}, {s(sSl)}, 3")
    k(f"v_lshlrev_b32 {v(vL16)}, 4, {v(vL)}")
    k(f"v_lshrrev_b32 {v(a)}, 5, {v(vL)}")
    k(f"v_and_b32 {v(b)}, 0x1f0, {v(vL16)}")
    k(f"v_lshl_add_u32 {v(vGo)}, {v(a)}, 11, {v(b)}")
    k(f"s_lshl3_add_u32 {s(sT)}, {s(sCb)}, {s(sPart)}")
    k(f"s_lshl_b32 {s(sT)}, {s(sT)}, 9")
    k(f"s_add_u32 {s(sT)}, {s(sT)}, {W_HX}")
    k(f"s_mul_i32 {s(sT2)}, {s(sPart)}, {8 * 7168}")
    k(f"s_lshl_b32 {s(sGp)}, {s(sCb)}, 7")
    k(f"s_add_u32 {s(sT2)}, {s(sT2)}, {s(sGp)}")
    k(f"s_add_u32 {s(sT2)}, {s(sT2)}, {W_PART}")
    k("s_cmp_lt_u32 s2, 224")
    k(f"s_cselect_b32 {s(sT)}, {s(sT)}, {OOB}")
    k(f"s_cselect_b32 {s(sT2)}, {s(sT2)}, {OOB}")
    k(f"v_lshrrev_b32 {v(a)}, 3, {v(vL)}")
    k(f"v_and_b32 {v(b)}, 0x70, {v(vL16)}")
    k(f"v_mul_u32_u24 {v(a)}, 7168, {v(a)}")
    k(f"v_add_u32 {v(vXo)}, {v(a)}, {v(b)}")
    k(f"v_lshlrev_b32 {v(b)}, 8, {v(vL)}")
    k(f"v_add_u32 {v(a)}, {s(sQ)}, {v(b)}")
    k(f"v_sub_u32 {v(b)}, {s(sRP)}, {v(b)}")
    k(f"s_cmp_eq_u32 {s(sHF)}, 0")
    k("s_cselect_b64 vcc, 0, -1")
    k(f"v_cndmask_b32 {v(a)}, {v(a)}, {v(b)}, vcc")
    k(f"v_and_b32 {v(b)}, 7, {v(a)}")
    k(f"v_and_b32 {v(a)}, 0x7f8, {v(a)}")
    k(f"v_lshl_add_u32 {v(vSo)}, {v(b)}, 11, {v(a)}")
    k(f"s_mov_b32 {s(sSt)}, {W_STATS}")
    k(f"v_lshlrev_b32 {v(a)}, 3, {v(vL)}")
    k("s_waitcnt lgkmcnt(0)")
    vm.issue(f"buffer_load_dwordx2 {v(G + 2, 2)}, {v(vZ)}, {WS}, {s(sEp)} offen sc1", "ep")
    vm.issue(f"buffer_store_dwordx4 {v(M1, 4)}, {v(vGo)}, {WS}, {s(sT)} offen sc1")
    vm.issue(f"buffer_store_dwordx4 {v(M1, 4)}, {v(vXo)}, {WS}, {s(sT2)} offen sc1")
    k(f"s_add_u32 {s(sT2)}, {s(sT2)}, {32 * 7168}")
    vm.issue(f"buffer_store_dwordx4 {v(M1, 4)}, {v(vXo)}, {WS}, {s(sT2)} offen sc1")
    k("s_mov_b64 exec, 0xff")
    vm.issue(f"buffer_store_dwordx2 {v(M1, 2)}, {v(vSo)}, {WS}, {s(sSt)} offen sc1")
    k("s_mov_b64 exec, -1")
    lg.issue(f"ds_write_b64 {v(a)}, {v(M1, 2)} offset:{M_FIN}")
    k(f"v_lshlrev_b32 {v(vGo)}, 12, {v(vL)}")
    k("s_and_b32 s3, s2, 3")
    k(f"s_lshl_b32 {s(sGp)}, s3, 10")
    k("s_and_b32 s3, s2, 0xfc")
    k(f"s_lshl2_add_u32 {s(sGp)}, s3, {s(sGp)}")
    k(f"s_add_u32 {s(sGp)}, {s(sGp)}, {W_GRAN}")
    k(f"s_lshl_b32 {s(sGr)}, {s(sX8)}, 12")
    k(f"s_add_u32 {s(sGr)}, {s(sGr)}, {W_GRAN}")
    k(f"s_mov_b32 {s(sCnt)}, 0")
    k(f"s_lshl_b32 {s(sT)}, {s(sHF)}, 5")
    k(f"v_lshlrev_b32 {v(vL4)}, 2, {v(vL)}")
    k(f"v_add_u32 {v(vRm)}, {s(sT)}, {v(vL4)}")
    k(f"v_lshrrev_b32 {v(a)}, 4, {v(vL)}")
    k(f"v_bfe_u32 {v(b)}, {v(vL)}, 1, 3")
    k(f"v_lshl_add_u32 {v(a)}, {v(b)}, 2, {v(a)}")
    k(f"s_lshl_b32 {s(sT)}, {s(sPart)}, 9")
    k(f"v_lshl_add_u32 {v(vXo)}, {v(a)}, 4, {s(sT)}")
    k(f"s_mov_b32 {s(sOdd)}, 0xaaaaaaaa")
    k(f"s_mov_b32 {s(sOdd + 1)}, 0xaaaaaaaa")
    if P["pads"]:
        k("s_mov_b64 exec, 0")
        for i in range(npad[0]):
            k(f"s_branch PAD{i}")
            k(f"PRET{i}:")
        k("s_mov_b64 exec, -1")
    vm.wait("ep")
    k(f"v_add_u32 {v(G + 2)}, 2, {v(G + 2)}")
    k(f"v_or_b32 {v(G + 2)}, 1, {v(G + 2)}")
    k(f"v_readfirstlane_b32 {s(sNo + 1)}, {v(G + 3)}")
    k(f"v_readfirstlane_b32 {s(sNo)}, {v(G + 2)}")
    stamp(lg, "nonce")
    lg.all()
    k("s_barrier")
    Kq, St = V(8), V(2)
    lg.issue(f"ds_read_b128 {v(Kq, 4)}, {v(vZ)} offset:{M_KEY}", "k0")
    lg.issue(f"ds_read_b128 {v(Kq + 4, 4)}, {v(vZ)} offset:{M_KEY + 16}", "k1")
    lg.issue(f"ds_read_b32 {v(St)}, {v(vRm)} offset:{M_RS}")
    lg.issue(f"ds_read_b32 {v(St + 1)}, {v(vL4)} offset:{M_MEAN}", "st")
    h1, m1, h2, m2 = (V() for _ in range(4))
    lg.wait("k0")
    k(f"v_max3_u32 {v(h1)}, {v(Kq)}, {v(Kq + 1)}, {v(Kq + 2)}")
    k(f"v_med3_u32 {v(m1)}, {v(Kq)}, {v(Kq + 1)}, {v(Kq + 2)}")
    lg.wait("k1")
    k(f"v_max3_u32 {v(h2)}, {v(Kq + 3)}, {v(Kq + 4)}, {v(Kq + 5)}")
    k(f"v_med3_u32 {v(m2)}, {v(Kq + 3)}, {v(Kq + 4)}, {v(Kq + 5)}")
    k(f"v_med3_u32 {v(b)}, {v(h1)}, {v(h2)}, {v(Kq + 6)}")
    k(f"v_max3_u32 {v(h1)}, {v(h1)}, {v(h2)}, {v(Kq + 6)}")
    k(f"v_max3_u32 {v(b)}, {v(b)}, {v(m1)}, {v(m2)}")
    k(f"v_max_u32 {v(G)}, {v(h1)}, {v(Kq + 7)}")
    k(f"v_med3_u32 {v(G + 1)}, {v(h1)}, {v(b)}, {v(Kq + 7)}")
    k("s_mov_b64 exec, 0xff")
    vm.all()
    vm.issue(f"buffer_store_dwordx4 {v(G, 4)}, {v(vGo)}, {WS}, {s(sGp)} offen sc1")
    lg.wait("st")
    vm.issue(f"buffer_store_dwordx2 {v(St, 2)}, {v(vSo)}, {WS}, {s(sSt)} offen sc1")
    k("s_mov_b64 exec, -1")
    stamp(lg, "pub")
    k(f"v_readfirstlane_b32 {s(sK)}, {v(G)}")
    k(f"v_readfirstlane_b32 {s(sK + 1)}, {v(G + 1)}")
    k("s_barrier")
    k("s_barrier")
    V.free(Kq, 8)
    Q, xs, xf = V(16), V(4), V(8)
    c0, c1, c2_ = S(2), S(2), S(2)

    def gran_loads():
        for j in range(4):
            k(f"buffer_load_dwordx4 {v(Q + 4 * j, 4)}, {v(vL16)}, {WS}, {s(sGr)} offen offset:{1024 * j} sc1")

    k("POLLA:")
    k(f"v_mov_b32 {v(a)}, {s(sK)}")
    k(f"v_mov_b32 {v(b)}, {s(sK + 1)}")
    k(f"s_mov_b64 {s(sC, 2)}, {s(sK, 2)}")
    k(f"v_cndmask_b32 {v(a)}, {v(a)}, {v(b)}, {s(sOdd, 2)}")
    k(f"v_and_b32 {v(h2)}, 0x7ff, {v(a)}")
    k(f"v_and_b32 {v(b)}, 7, {v(a)}")
    k(f"v_and_b32 {v(a)}, 0x7f8, {v(a)}")
    k(f"v_lshl_add_u32 {v(m2)}, {v(h2)}, 11, {v(vXo)}")
    k(f"v_lshl_add_u32 {v(a)}, {v(b)}, 11, {v(a)}")
    k(f"buffer_load_dwordx4 {v(xs, 4)}, {v(m2)}, {X}, 0 offen")
    k(f"buffer_load_dwordx2 {v(St, 2)}, {v(a)}, {WS}, {s(sSt)} offen sc1")
    gran_loads()
    k("s_mov_b64 exec, 3")
    k(f"ds_write_b32 {v(vL4)}, {v(h2)} offset:{M_SEL}")
    k("s_mov_b64 exec, -1")
    k("s_waitcnt vmcnt(5)")
    for j in range(4):
        k(f"v_lshlrev_b32 {v(xf + 2 * j)}, 16, {v(xs + j)}")
        k(f"v_and_b32 {v(xf + 2 * j + 1)}, 0xffff0000, {v(xs + j)}")
    k("s_waitcnt vmcnt(4)")
    k(f"v_max_u32 {v(a)}, {v(St)}, {v(St + 1)}")
    k(f"v_mul_f32 {v(St + 1)}, -{v(St)}, {v(St + 1)}")
    k(f"v_cmp_ne_u32 {s(sOk, 2)}, -1, {v(a)}")
    for j in range(8):
        k(f"v_fma_f32 {v(xf + j)}, {v(xf + j)}, {v(St)}, {v(St + 1)}")
    for j in range(4):
        k(f"v_cvt_pk_bf16_f32 {v(xs + j)}, {v(xf + 2 * j)}, {v(xf + 2 * j + 1)}")
    k(f"ds_write_b128 {v(vL16)}, {v(xs, 4)} offset:{M_XN}")
    k("REDUCE:")
    k(f"s_add_u32 {s(sCnt)}, {s(sCnt)}, 1")
    k("s_waitcnt vmcnt(3)")
    k(f"v_cmp_eq_u64 vcc, {s(sNo, 2)}, {v(Q + 2, 2)}")
    k("s_waitcnt vmcnt(2)")
    k(f"v_cmp_eq_u64 {s(c0, 2)}, {s(sNo, 2)}, {v(Q + 6, 2)}")
    k(f"v_max_u32 {v(m1)}, {v(Q + 1)}, {v(Q + 5)}")
    k(f"v_max_u32 {v(h1)}, {v(Q)}, {v(Q + 4)}")
    k(f"v_med3_u32 {v(m1)}, {v(Q)}, {v(Q + 4)}, {v(m1)}")
    k("s_waitcnt vmcnt(1)")
    k(f"v_cmp_eq_u64 {s(c1, 2)}, {s(sNo, 2)}, {v(Q + 10, 2)}")
    k(f"s_and_b64 vcc, vcc, {s(c0, 2)}")
    k("s_waitcnt vmcnt(0)")
    k(f"v_cmp_eq_u64 {s(c2_, 2)}, {s(sNo, 2)}, {v(Q + 14, 2)}")
    k(f"v_max_u32 {v(m2)}, {v(Q + 9)}, {v(Q + 13)}")
    k(f"v_max_u32 {v(h2)}, {v(Q + 8)}, {v(Q + 12)}")
    k(f"v_med3_u32 {v(m2)}, {v(Q + 8)}, {v(Q + 12)}, {v(m2)}")
    k(f"s_and_b64 vcc, vcc, {s(c1, 2)}")
    k(f"v_max_u32 {v(m1)}, {v(m1)}, {v(m2)}")
    k(f"s_and_b64 vcc, vcc, {s(c2_, 2)}")
    k(f"v_med3_u32 {v(m1)}, {v(h1)}, {v(h2)}, {v(m1)}")
    k(f"v_max_u32 {v(h1)}, {v(h1)}, {v(h2)}")
    k(f"v_cndmask_b32 {v(m1)}, 0, {v(m1)}, vcc")
    k(f"v_cndmask_b32 {v(h1)}, 0, {v(h1)}, vcc")
    for ctl in ("row_ror:8 row_mask:0xf", "row_ror:4 row_mask:0xf", "row_ror:2 row_mask:0xf", "row_ror:1 row_mask:0xf",
                "row_bcast:15 row_mask:0xa", "row_bcast:31 row_mask:0xc"):
        k(f"v_max_u32_dpp {v(m2)}, {v(m1)}, {v(m1)} {ctl} bank_mask:0xf")
        k(f"v_mov_b32_dpp {v(h2)}, {v(h1)} {ctl} bank_mask:0xf")
        k(f"v_med3_u32 {v(m1)}, {v(h1)}, {v(h2)}, {v(m2)}")
        k(f"v_max_u32 {v(h1)}, {v(h1)}, {v(h2)}")
    k(f"s_and_b64 vcc, vcc, {s(sOk, 2)}")
    k(f"v_readlane_b32 {s(sK)}, {v(h1)}, 63")
    k(f"v_readlane_b32 {s(sK + 1)}, {v(m1)}, 63")
    k(f"s_cmp_eq_u64 {s(sK, 2)}, {s(sC, 2)}")
    k("s_cbranch_scc0 AGAIN")
    k("s_cmp_eq_u64 vcc, -1")
    k("s_cbranch_scc1 GOT")
    k(f"s_cmp_eq_u64 {s(sOk, 2)}, -1")
    k("s_cbranch_scc0 AGAIN")
    k(f"s_cmp_ge_u32 {s(sCnt)}, {SPIN}")
    k("s_cbranch_scc1 GOT")
    gran_loads()
    k("s_branch REDUCE")
    k("AGAIN:")
    k(f"s_cmp_lt_u32 {s(sCnt)}, {SPIN}")
    k("s_cbranch_scc1 POLLA")
    k("GOT:")
    vm.done = vm.n
    k("s_waitcnt lgkmcnt(0)")
    stamp(lg, "got")
    k("s_barrier")
    stamp(lg, "sel")
    V.free(Q, 16), V.free(xs, 4), V.free(xf, 8)
    k("s_cmp_lg_u32 s2, 0")
    k("s_cbranch_scc1 NOEP")
    k("s_mov_b64 exec, 1")
    k(f"buffer_store_dwordx2 {v(G + 2, 2)}, {v(vZ)}, {WS}, {s(sEp)} offen sc1")
    k("s_mov_b64 exec, -1")
    k("NOEP:")
    sOwnM, sBlk, sWant, sRole, sKey, sRow, sPb = (S() for _ in range(7))
    k(f"s_and_b32 {s(sBlk)}, {s(sU)}, 15")
    k(f"s_lshr_b32 {s(sWant)}, {s(sU)}, 4")
    k(f"s_lshl_b32 {s(sWant)}, {s(sWant)}, 10")
    k(f"s_or_b32 {s(sWant)}, {s(sWant)}, {s(sX8)}")
    k(f"s_mov_b32 {s(sOwnM)}, 0")
    for role in range(4):
        if role < 2:
            k(f"s_and_b32 {s(sT)}, {s(sK + role)}, 0x407")
        else:
            k(f"s_sub_u32 {s(sT)}, 0, {s(sK + role - 2)}")
            k(f"s_and_b32 {s(sT)}, {s(sT)}, 0x407")
        k(f"s_cmp_eq_u32 {s(sT)}, {s(sWant)}")
        k(f"s_cselect_b32 {s(sT)}, {1 << role}, 0")
        k(f"s_or_b32 {s(sOwnM)}, {s(sOwnM)}, {s(sT)}")
    k("s_cbranch_scc0 MEND")
    As = V(4)
    Pd = V(28)
    vN, vFo, vOo, sg = V(), V(), V(), V()
    ac, bs = V(4), V(4)
    if not P["merge3"]:
        k("s_barrier")
    k(f"v_and_b32 {v(vN)}, 15, {v(vL)}")
    k(f"v_and_b32 {v(a)}, 1, {v(vL)}")
    k(f"v_lshlrev_b32 {v(a)}, 4, {v(a)}")
    k(f"v_mov_b32 {v(b)}, 0x3f80")
    k(f"v_lshlrev_b32 {v(a)}, {v(a)}, {v(b)}")
    k(f"v_lshrrev_b32 {v(b)}, 1, {v(vN)}")
    for j in range(4):
        k(f"v_cmp_eq_u32 vcc, {j}, {v(b)}")
        k(f"v_cndmask_b32 {v(As + j)}, 0, {v(a)}, vcc")
    k(f"v_and_b32 {v(a)}, 3, {v(vL)}")
    k(f"v_bfe_u32 {v(b)}, {v(vL)}, 4, 1")
    k(f"v_lshl_add_u32 {v(a)}, {v(a)}, 1, {v(b)}")
    k(f"v_lshlrev_b32 {v(vFo)}, 4, {v(a)}")
    k(f"v_lshlrev_b32 {v(vOo)}, 3, {v(a)}")
    k("s_barrier")
    stamp(lg, "fin")
    k("ROLE:")
    k(f"s_ff1_i32_b32 {s(sRole)}, {s(sOwnM)}")
    k(f"s_bitset0_b32 {s(sOwnM)}, {s(sRole)}")
    k(f"s_bitcmp1_b32 {s(sRole)}, 0")
    k(f"s_cselect_b32 {s(sKey)}, {s(sK + 1)}, {s(sK)}")
    k(f"s_cselect_b32 {s(sPb)}, 32, 0")
    k(f"s_sub_u32 {s(sCb)}, 31, {s(sBlk)}")
    k(f"s_bitcmp1_b32 {s(sRole)}, 1")
    k(f"s_cselect_b32 {s(sCb)}, {s(sCb)}, {s(sBlk)}")
    k(f"s_add_u32 {s(sPb)}, {s(sPb)}, {s(sCb)}")
    k(f"s_mul_i32 {s(sPb)}, {s(sPb)}, 7168")
    k(f"s_add_u32 {s(sPb)}, {s(sPb)}, {W_PART}")
    k(f"s_add_u32 {s(sPart)}, {s(sPb)}, 4096")
    k(f"s_and_b32 {s(sRow)}, {s(sKey)}, 0x7ff")
    k(f"s_lshl_b32 {s(sRow)}, {s(sRow)}, 11")
    k(f"s_lshl_b32 {s(sCb)}, {s(sCb)}, 6")
    k(f"s_add_u32 {s(sRow)}, {s(sRow)}, {s(sCb)}")
    k(f"s_lshl_b32 {s(sT)}, {s(sRole)}, 7")
    k(f"v_add_u32 {v(a)}, {s(sT)}, {v(vFo)}")
    k(f"s_mov_b32 {s(sCnt)}, 0")
    k(f"v_mov_b32 {v(sg)}, {s(sKey)}")
    k(f"v_ashrrev_i32 {v(b)}, 31, {v(sg)}")
    k(f"v_not_b32 {v(b)}, {v(b)}")
    k(f"v_or_b32 {v(b)}, 0x80000000, {v(b)}")
    k(f"v_xor_b32 {v(sg)}, {v(sg)}, {v(b)}")
    k(f"v_mul_f32 {v(sg)}, {fl(-1.4426950408889634)}, {v(sg)}")
    k(f"v_exp_f32 {v(sg)}, {v(sg)}")
    k(f"v_add_f32 {v(sg)}, 1.0, {v(sg)}")
    k(f"v_rcp_f32 {v(sg)}, {v(sg)}")
    k("RPOLL:")
    for j in range(7):
        k(f"buffer_load_dwordx4 {v(Pd + 4 * j, 4)}, {v(vL16)}, {WS}, {s(sPb if j < 4 else sPart)} offen offset:{(j & 3) * 1024} sc1")
    k(f"s_add_u32 {s(sCnt)}, {s(sCnt)}, 1")
    for j in range(7):
        k(f"s_waitcnt vmcnt({6 - j})")
        mf(ac, As, Pd + 4 * j, ac if j else None)
    k(f"ds_read_b128 {v(bs, 4)}, {v(a)} offset:{M_FIN}")
    k(f"s_cmp_ge_u32 {s(sCnt)}, {SPIN}")
    k("s_cbranch_scc1 RGOT")
    k(f"v_cmp_u_f32 vcc, {v(ac)}, {v(ac)}")
    k("s_cbranch_vccnz RPOLL")
    k("RGOT:")
    for sh in (4, 8):
        for j in range(4):
            k(f"v_add_f32_dpp {v(ac + j)}, {v(ac + j)}, {v(ac + j)} row_ror:{sh} row_mask:0xf bank_mask:0xf")
    k("FCHK:")
    k("s_waitcnt lgkmcnt(0)")
    k(f"v_max3_u32 {v(b)}, {v(bs)}, {v(bs + 1)}, {v(bs + 2)}")
    k(f"v_max_u32 {v(b)}, {v(b)}, {v(bs + 3)}")
    k(f"v_cmp_eq_u32 vcc, -1, {v(b)}")
    k("s_cbranch_vccnz FRETRY")
    k("FOK:")
    for j in range(4):
        k(f"v_fmac_f32 {v(bs + j)}, {v(ac + j)}, {v(sg)}")
    k(f"v_cvt_pk_bf16_f32 {v(bs)}, {v(bs)}, {v(bs + 1)}")
    k(f"v_cvt_pk_bf16_f32 {v(bs + 1)}, {v(bs + 2)}, {v(bs + 3)}")
    k("s_mov_b64 exec, 0x000f000f")
    k(f"buffer_store_dwordx2 {v(bs, 2)}, {v(vOo)}, {OUT}, {s(sRow)} offen{P['outflag']}")
    k("s_mov_b64 exec, -1")
    k(f"s_cmp_lg_u32 {s(sOwnM)}, 0")
    k("s_cbranch_scc1 ROLE")
    stamp(lg, "done")
    if P.get("stretch"):
        nm, K = P["stretch"]
        k("s_waitcnt lgkmcnt(0)")
        i = stamps.index(nm)
        k(f"s_sub_u32 s3, {s(sStamp + 2 * i)}, {s(sStamp)}")
        k(f"s_mul_i32 s3, s3, {K}")
        k("s_min_u32 s3, s3, 20000")
        k(f"s_add_u32 s3, s3, {s(sStamp + 2 * (len(stamps) - 1))}")
        k("STR:")
        k("s_memrealtime s[4:5]")
        k("s_waitcnt lgkmcnt(0)")
        k("s_sub_u32 s4, s4, s3")
        k("s_cmp_lt_i32 s4, 0")
        k("s_cbranch_scc1 STR")
    k("MEND:")
    if prof:
        stamp_flush(lg, sW, stamps)
    prof_names["comm"] = list(stamps)
    k("s_endpgm")
    k("FRETRY:")
    k(f"s_add_u32 {s(sCnt)}, {s(sCnt)}, 1")
    k(f"s_cmp_ge_u32 {s(sCnt)}, {SPIN * 16}")
    k("s_cbranch_scc1 FOK")
    k(f"ds_read_b128 {v(bs, 4)}, {v(a)} offset:{M_FIN}")
    k("s_branch FCHK")

    k.vgprs = max(vtop, V.top)
    k.lines, nnop = hazard.pad(k.lines)
    text = build([k], single=True, notes="generated by gen/fused2.py")
    text = text.replace(".p2align 8\n.type", ".p2align 12\n.type")
    open(path, "w").write(text)
    if prof:
        import json
        json.dump(prof_names, open(path + ".json", "w"))
    return dict(vgprs=k.vgprs, nops=nnop, lines=len(k.lines), prof=prof_names)


if __name__ == "__main__":
    print(gen("g0.s"))
    print(gen("g0p.s", prof=True))
```

```python
import struct
import sys
sys.path.insert(0, "gen")
from asmlib import Kernel, build, KA, SIZES, v, s
import hazard
import pads

NAME = "parallel_sum__spectral_fnet__moe_arch_mod__prompt_kernel"

XS, T1, T2, MISC, WBASE = 0, 32768, 49408, 58112, 61440
M_RS, M_KEY, M_SEL, M_MEAN, M_XN, M_FIN = MISC, MISC + 64, MISC + 128, MISC + 160, MISC + 256, MISC + 2304
XC = 24576 + 64
M_GOT, M_DFL = M_SEL + 8, M_SEL + 12
M_CNT = M_SEL + 16
LDS_BYTES = WBASE + 3 * 32768
W_U, W_STATS, W_EPOCH, W_GRAN, W_PART, W_HX, W_END, W_PROF = 0, 0x240000, 0x248000, 0x340000, 0x260000, 0x2d0000, 0x360000, 0x400000
OOB = 0x7000000
SPIN = 4096


def fl(x):
    return hex(struct.unpack("<I", struct.pack("<f", x))[0])


class Alloc:
    def __init__(self, first, limit):
        self.busy = [i < first for i in range(limit)]
        self.top = first

    def __call__(self, n=1, align=None):
        al = align or (2 if n > 1 else 1)
        if n == 1:
            for b in range(len(self.busy) - 1):
                if not self.busy[b] and self.busy[b ^ 1] and b < self.top:
                    self.busy[b] = True
                    return b
        for b in range(0, len(self.busy) - n + 1, al):
            if not any(self.busy[b:b + n]):
                for i in range(b, b + n):
                    self.busy[i] = True
                self.top = max(self.top, b + n)
                return b
        raise RuntimeError("out of registers")

    def free(self, b, n=1):
        for i in range(b, b + n):
            assert self.busy[i], i
            self.busy[i] = False


class Counter:
    def __init__(self, k, name, cap):
        self.k, self.name, self.cap = k, name, cap
        self.n, self.done, self.tags, self.dirty = 0, 0, {}, False

    def issue(self, text, tag=None):
        self.k(text)
        self.n += 1
        if tag:
            self.tags[tag] = self.n

    def wait(self, *tags):
        tgt = max(self.tags[t] for t in tags)
        if tgt <= self.done:
            return
        left = self.n - tgt
        if self.dirty:
            left, self.dirty = 0, False
        left = min(left, self.cap)
        self.k(f"s_waitcnt {self.name}({left})")
        self.done = self.n - left

    def all(self):
        if self.done < self.n or self.dirty:
            self.k(f"s_waitcnt {self.name}(0)")
        self.done, self.dirty = self.n, False


DEFAULT = dict(
    prof=False,
    n0=16, n1=8, n2=8, depth=16, dpre=16, dthr=True,
    clr="post", epoll="pub",
    wnt=True, outflag="", pads=False, xnt=False, uqs=16384,
    fs=0, fq=0, hxn=0, dad=0, dan=0, ush=0, xc=0, rl=0, rsel=0, order="A", res_at="ust", tile_at="got", hx_at=4,
    wr="lds", oth_at="xiss", tA=None, tAw="0,1,2,3,4,5,6,7", tB=None, tC="A", tL="A", blk=1024,
    rep="x8", first="C", two=False, mark_at="red1",
    spin=False, sread="0,2,3", xm=8, pw_at="pre3", pw_n=0, lbl=False, barg=False, dgu=0, pf="", pfd=2, pfb=99, pfs=0, pfe=0, tn=2, clate="", tsc="sc1", hsc="sc1",
    bari=False, othbar="bar1a", n00=0, n0a=0,
    fin=False, spec=True, dmid=0, dlate=0, split=4, bar6=False, late_res=False, ddepth=None,
)


def gen(path, **over):
    P = dict(DEFAULT)
    P.update(over)
    prof = P["prof"]
    P["outflag"] = P["outflag"].replace("+", " ")
    k = Kernel(NAME, 256, 640, lds=LDS_BYTES)
    UQS = P["uqs"]
    V = Alloc(1, 168)
    S = Alloc(32, 102)
    vm, lg = Counter(k, "vmcnt", 63), Counter(k, "lgkmcnt", 15)
    X, WS, WG, WU, WD, OUT, WR = (s(i, 4) for i in (4, 8, 12, 16, 20, 24, 28))
    stamps = []
    sStamp = S(30, 2) if prof else None

    STD = "start consts bar0 x_in bar1 bar1b ust pre3 bar3 gu_in gu tile bar5 s2done hx pst nonce pub got sel fin done lwr l0 l1 l1b l2 lgi lgu ldi ldn".split()
    enabled = set(P.get("stamps") or STD) | {"start"}

    def stamp(lgc, name):
        if prof and name in enabled:
            i = len(stamps)
            assert i < 15
            k(f"s_memrealtime {s(sStamp + 2 * i, 2)}")
            stamps.append(name)

    DBG_SLOT = {"start": 0, "x_in": 1, "bar1": 2, "ust": 3, "pre3": 4, "bar3": 5, "tile": 6, "s2done": 7, "gu": 8, "dn_in": 9,
                "pst": 10, "pub": 11, "got": 12, "done": 13, "hx": 14}

    def stamp_flush(lgc, slot_sreg, names):
        t, a = V(), V()
        k("s_mov_b64 exec, -1")
        k("s_waitcnt lgkmcnt(0)")
        k(f"v_mov_b32 {v(t)}, 0")
        if prof == "none":
            V.free(t), V.free(a)
            return
        if prof == "dbg":
            lbl = f"NOFL{len(names)}"
            k(f"s_and_b32 s3, {s(slot_sreg)}, 7")
            k(f"s_cbranch_scc1 {lbl}")
            k(f"s_load_dwordx2 s[4:5], s[0:1], {KA['dbg']}")
            k("s_mov_b32 s6, 64")
            for i, nm in enumerate(names):
                if nm in DBG_SLOT:
                    k(f"v_writelane_b32 {v(t)}, {s(sStamp + 2 * i)}, {DBG_SLOT[nm]}")
            k(f"s_not_b32 s3, {s(sStamp)}")
            k(f"v_writelane_b32 {v(t)}, s3, 15")
            k(f"v_lshlrev_b32 {v(a)}, 2, {v(vL)}")
            k("s_waitcnt lgkmcnt(0)")
            k("s_mov_b64 exec, 0xffff")
            k(f"buffer_atomic_umax {v(t)}, {v(a)}, s[4:7], 0 offen sc1")
            k("s_mov_b64 exec, -1")
            k(f"{lbl}:")
            V.free(t), V.free(a)
            return
        for i in range(len(names)):
            k(f"v_writelane_b32 {v(t)}, {s(sStamp + 2 * i)}, {i}")
        k(f"v_lshlrev_b32 {v(a)}, 2, {v(vL)}")
        k("s_lshl_b32 s3, s2, 4")
        k(f"s_add_u32 s3, s3, {s(slot_sreg)}")
        k("s_lshl_b32 s3, s3, 6")
        k(f"s_add_u32 s3, s3, {W_PROF}")
        k("s_mov_b64 exec, 0xffff")
        k(f"buffer_store_dword {v(t)}, {v(a)}, {WS}, s3 offen")
        k("s_mov_b64 exec, -1")
        V.free(t), V.free(a)

    def site(name, at):
        if P["t" + name] == at:
            k(f";@T {name} {s(sW)} {P.get('t' + name + 'w', '0,1,2,3,4,5,6,7')}")

    def zero_rest(n):
        if prof:
            for i in range(len(stamps), min(15, len(stamps) + n)):
                k(f"s_mov_b32 {s(sStamp + 2 * i)}, 0")

    bar0 = P["wr"] == "lds"
    wrl = P["wr"] in ("lds", "lds2")
    bar0b = P["wr"] == "lds2"
    othl = P["oth_at"] == "load"
    assert not P["bari"] or P["first"]
    spin = P["spin"]
    assert not spin or (bar0b and P["bari"] and P["pollwait"])
    bar1a = othl and P["othbar"] == "bar1a" and not spin
    sread = [int(x) for x in str(P["sread"]).replace("(", "").replace(")", "").split(",") if x.strip()]

    def bari(lbl):
        if P["bari"]:
            k("s_cmpk_ge_u32 s2, 224")
            k(f"s_cbranch_scc1 {lbl}")
            k("s_barrier")
            k(f"{lbl}:")
    two = P["two"]

    def stat_addr(dst, row, a, b):
        k(f"v_and_b32 {v(a)}, 7, {v(row)}")
        k(f"v_and_b32 {v(b)}, 0x7f8, {v(row)}")
        if two:
            k(f"v_lshlrev_b32 {v(a)}, 12, {v(a)}")
            k(f"v_lshl_add_u32 {v(dst)}, {v(b)}, 1, {v(a)}")
        else:
            k(f"v_lshl_add_u32 {v(dst)}, {v(a)}, 11, {v(b)}")

    sW, sX8, sU, sHF, sQ, sRP, sT, sT2, sSl = (S() for _ in range(9))
    vL = V()
    k("s_cmpk_ge_u32 s2, 256")
    k("s_cbranch_scc1 END")
    stamp(lg, "start")
    t0 = V()
    k(f"v_lshrrev_b32 {v(t0)}, 6, v0")
    for reg, nm in ((4, "x"), (28, "w_r"), (8, "ws"), (12, "w_gate"), (16, "w_up"), (20, "w_down"), (24, "out")):
        k(f"s_load_dwordx2 {s(reg, 2)}, s[0:1], {KA[nm]}")
    k(f"v_readfirstlane_b32 {s(sW)}, {v(t0)}")
    k(f"s_lshr_b32 {s(sU)}, s2, 3")
    k(f"v_and_b32 {v(vL)}, 63, v0")
    if P["tA"] == "idle":
        k(f"s_lshl_b32 {s(sT)}, {s(sW)}, 5")
        k(f"s_add_u32 {s(sT)}, {s(sT)}, {s(sU)}")
        k(f"s_cmpk_lt_u32 {s(sT)}, {9 * 32 + 28}")
        k("s_cbranch_scc1 BUSY")
        k(f";@T A {s(sU)} 28,29,30,31")
        if not P["first"]:
            k("s_endpgm")
        k("BUSY:")
    k(f"s_and_b32 {s(sX8)}, s2, 7")
    k(f"s_lshr_b32 {s(sT)}, s2, 4")
    k(f"s_lshl3_add_u32 {s(sQ)}, {s(sT)}, {s(sX8)}")
    k(f"s_and_b32 {s(sHF)}, {s(sU)}, 1")
    k(f"s_cmp_eq_u32 {s(sQ)}, 0")
    k(f"s_cselect_b32 {s(sT)}, 128, {s(sQ)}")
    k(f"s_sub_u32 {s(sRP)}, 2048, {s(sT)}")
    k(f"s_mul_i32 {s(sSl)}, {s(sX8)}, 28")
    k(f"s_add_u32 {s(sSl)}, {s(sSl)}, {s(sU)}")
    assert SIZES["x"] == SIZES["out"] == 1 << 22 and W_END == 27 << 17 and SIZES["w_gate"] == 7 << 20
    k("s_lshl_b32 s6, 1, 22")
    k("s_lshl_b32 s7, 1, 17")
    k(f"s_lshl_b32 s10, {40 if prof else 27}, 17")
    k("s_mov_b32 s11, s7")
    k(f"s_cmp_eq_u32 {s(sW)}, 9")
    k(f"s_cbranch_scc1 {'LOADB' if P['bari'] and P['tA'] == 'idle' and not P['lbl'] else 'LOAD'}")
    k(f"s_cmp_eq_u32 {s(sW)}, 8")
    k("s_cbranch_scc1 COMM0")
    V.free(t0)
    common = (list(V.busy), list(S.busy), list(stamps))

    sOwn, sOth, sLo, sUs, sPart, sCb = (S() for _ in range(6))
    vXo = V()
    vN, vG, vR, vC, vG1, vL16 = (V() for _ in range(6))
    k(f"s_lshl_b32 {s(sT)}, {s(sW)}, 8")
    k(f"s_add_u32 {s(sOwn)}, {s(sQ)}, {s(sT)}")
    k(f"s_sub_u32 {s(sT)}, {s(sRP)}, {s(sT)}")
    k(f"s_cmp_eq_u32 {s(sHF)}, 0")
    k(f"s_cselect_b32 {s(sOth)}, {s(sT)}, {s(sOwn)}")
    k(f"s_cselect_b32 {s(sOwn)}, {s(sOwn)}, {s(sT)}")
    k(f"s_lshl_b32 {s(sLo)}, {s(sW)}, 11")
    k(f"s_lshl_b32 {s(sT)}, {s(sHF)}, 14")
    k(f"s_add_u32 {s(sLo)}, {s(sLo)}, {s(sT)}")
    a, b = V(), V()
    k(f"v_and_b32 {v(a)}, 32, {v(vL)}")
    k(f"v_lshlrev_b32 {v(vL16)}, 4, {v(vL)}")
    k(f"v_lshrrev_b32 {v(vR)}, 2, {v(vL)}")
    k(f"v_xor_b32 {v(vXo)}, {v(vL16)}, {v(a)}")
    vWo, sWr = V(), S()
    if wrl:
        k(f"s_lshl_b32 {s(sWr)}, {s(sW)}, 8")
        k(f"s_add_u32 m0, {s(sWr)}, {T2}")
        k(f"s_and_b32 {s(sT2)}, {s(sW)}, 2")
        k(f"s_lshl_b32 {s(sT2)}, {s(sT2)}, 4")
        k(f"v_lshrrev_b32 {v(vWo)}, 2, {v(vL16)}")
    k(f"s_movk_i32 s30, {SIZES['w_r']}")
    k("s_mov_b32 s31, s7")
    if wrl:
        k(f"v_xor_b32 {v(vWo)}, {s(sT2)}, {v(vWo)}")
    k(f"s_lshl_b32 {s(sT2)}, {s(sOwn)}, 11")
    k(f"s_lshl_b32 {s(sOth)}, {s(sOth)}, 11")
    k(f"v_and_b32 {v(vC)}, 3, {v(vL)}")
    k(f"v_and_b32 {v(vN)}, 15, {v(vL)}")
    k(f"v_lshrrev_b32 {v(vG)}, 4, {v(vL)}")
    k(f"v_and_b32 {v(vR)}, 3, {v(vR)}")
    k(f"v_and_b32 {v(vG1)}, 1, {v(vG)}")
    V.free(a), V.free(b)
    vKA = V(4)
    arg = V(8)
    f, ph, a, tw = V(), V(), V(), V()
    sE1 = S()
    k(f"s_lshl_b32 {s(sE1)}, {s(sHF)}, 3")
    k(f"s_cmp_eq_u32 {s(sHF)}, 0")
    k(f"s_cselect_b32 {s(sT)}, 1, 63")
    k(f"v_lshrrev_b32 {v(f)}, 1, {v(vN)}")
    k(f"v_add_u32 {v(f)}, {s(sE1)}, {v(f)}")
    k(f"v_and_b32 {v(ph)}, 1, {v(vN)}")
    k(f"v_cmp_ne_u32 vcc, {s(sT)}, {v(vN)}")
    k(f"v_cvt_f32_u32 {v(a)}, {v(vG)}")
    k(f"v_cndmask_b32 {v(f)}, 16, {v(f)}, vcc")
    vG4f = V()
    k(f"v_mul_f32 {v(vG4f)}, 4.0, {v(a)}")
    k(f"v_cndmask_b32 {v(ph)}, 0, {v(ph)}, vcc")
    k(f"v_cvt_f32_u32 {v(f)}, {v(f)}")
    k(f"v_cvt_f32_u32 {v(ph)}, {v(ph)}")
    k(f"v_add_f32 {v(a)}, {v(vG4f)}, {v(vG4f)}")
    k(f"v_mul_f32 {v(f)}, {fl(1 / 32)}, {v(f)}")
    k(f"v_mul_f32 {v(ph)}, {fl(0.25)}, {v(ph)}")
    k(f"v_cos_f32 {v(tw)}, {v(f)}")
    k(f"v_fma_f32 {v(arg)}, {v(f)}, {v(a)}, {v(ph)}")
    k(f"v_add_f32 {v(arg + 1)}, {v(arg)}, {v(f)}")
    site("A", "karg")
    k("s_waitcnt lgkmcnt(0)")
    stamp(lg, "karg")
    xo, vWr = V(8), V(8)
    xn = " nt" if P["xnt"] else ""
    if wrl:
        vm.issue(f"buffer_load_dword {v(vWo)}, {WR}, {s(sWr)} offen lds", "wr")
    k(f"s_xor_b32 m0, {s(sLo)}, 16384")
    V.free(vWo), S.free(sWr)
    vm.issue(f"buffer_load_dwordx4 {v(xo, 4)}, {v(vXo)}, {X}, {s(sT2)} offen{xn}")
    vm.issue(f"buffer_load_dwordx4 {v(xo + 4, 4)}, {v(vXo)}, {X}, {s(sT2)} offen offset:1024{xn}", "own")
    if P["wr"] == "vgpr2":
        bari("BI0")
    if not wrl:
        vm.issue(f"buffer_load_dwordx4 {v(vWr, 4)}, {v(vXo)}, {WR}, 0 offen")
        vm.issue(f"buffer_load_dwordx4 {v(vWr + 4, 4)}, {v(vXo)}, {WR}, 0 offen offset:1024", "wr")

    def oth_loads(at):
        if othl and at == "mid":
            k("s_cmpk_lt_u32 s2, 224")
            k("s_cbranch_scc1 NOOTH")
            k(f"buffer_load_dwordx4 {v(vXo)}, {X}, {s(sOth)} offen{xn} lds")
            k(f"buffer_load_dwordx4 {v(vXo)}, {X}, {s(sOth)} offen offset:1024{xn} lds")
            k("NOOTH:")
        if P["oth_at"] == at:
            vm.issue(f"buffer_load_dwordx4 {v(vXo)}, {X}, {s(sOth)} offen{xn} lds")
            vm.issue(f"buffer_load_dwordx4 {v(vXo)}, {X}, {s(sOth)} offen offset:1024{xn} lds", "oth")

    oth_loads("xiss")
    stamp(lg, "xiss")
    if P["wr"] != "vgpr2":
        bari("BI0")
    stamp(lg, "bari")
    site("A", "xiss")
    if P["first"]:
        k("s_branch CMP2")
    k(";@AUX0")
    k(";@R A 0 2")
    k("CMP2:")

    def cheb(dst, n, tw2):
        return [f"v_fma_f32 {v(dst + j)}, {v(tw2)}, {v(dst + j - 1)}, -{v(dst + j - 2)}" for j in range(2, n)]

    k(f"v_cos_f32 {v(arg)}, {v(arg)}")
    k(f"v_cos_f32 {v(arg + 1)}, {v(arg + 1)}")
    k(f"v_add_f32 {v(tw)}, {v(tw)}, {v(tw)}")
    vMk, vInv = V(), V()
    k(f"s_add_u32 {s(sT)}, {s(sT)}, -1")
    k(f"v_cmp_ne_u32 vcc, {s(sT)}, {v(vN)}")
    k(f"v_mov_b32 {v(vMk)}, {fl(-32.0)}")
    k(f"v_mov_b32 {v(vInv)}, {fl(1 / 1024)}")
    for x in cheb(arg, 8, tw):
        k(x)
    k(f"v_cndmask_b32 {v(vMk)}, {v(vMk)}, 0, vcc")
    for j in range(4):
        k(f"v_cvt_pk_bf16_f32 {v(vKA + j)}, {v(arg + 2 * j)}, {v(arg + 2 * j + 1)}")
    k(f"s_mul_i32 {s(sUs)}, {s(sQ)}, {UQS}")
    k(f"s_lshl3_add_u32 {s(sT)}, {s(sHF)}, {s(sW)}")
    k(f"s_lshl_b32 {s(sT)}, {s(sT)}, 10")
    k(f"s_add_u32 {s(sUs)}, {s(sUs)}, {s(sT)}")
    k(f"s_lshr_b32 {s(sCb)}, {s(sSl)}, 2")
    k(f"s_and_b32 {s(sPart)}, {s(sSl)}, 3")

    vC0, vS0, vNS0, vC1, vS1, vNC1 = (V(4) for _ in range(6))
    sn = V(8)
    k(f"s_add_u32 {s(sE1)}, {s(sE1)}, {s(sW)}")

    def stepc_trig(dc, ds):
        k(f"v_mul_f32 {v(arg)}, {v(f)}, {v(vG4f)}")
        k(f"v_cos_f32 {v(tw)}, {v(f)}")
        k(f"v_fmamk_f32 {v(arg + 4)}, {v(f)}, {fl(16.0)}, {v(arg)}")
        k(f"v_add_f32 {v(arg + 1)}, {v(arg)}, {v(f)}")
        k(f"v_add_f32 {v(arg + 5)}, {v(arg + 4)}, {v(f)}")
        k(f"v_add_f32 {v(tw)}, {v(tw)}, {v(tw)}")
        for j in (0, 1, 4, 5):
            k(f"v_sin_f32 {v(sn + j)}, {v(arg + j)}")
            k(f"v_cos_f32 {v(arg + j)}, {v(arg + j)}")
        for grp in zip(cheb(sn, 4, tw), cheb(arg, 4, tw), cheb(sn + 4, 4, tw), cheb(arg + 4, 4, tw)):
            for x in grp:
                k(x)
        for j in range(4):
            k(f"v_cvt_pk_bf16_f32 {v(ds + j)}, {v(sn + 2 * j)}, {v(sn + 2 * j + 1)}")
            k(f"v_cvt_pk_bf16_f32 {v(dc + j)}, {v(arg + 2 * j)}, {v(arg + 2 * j + 1)}")

    k(f"v_lshl_add_u32 {v(f)}, {v(vN)}, 5, {s(sE1)}")
    k(f"v_mov_b32 {v(a)}, 512")
    k(f"v_cmp_eq_u32 vcc, 0, {v(f)}")
    k(f"v_cndmask_b32 {v(f)}, {v(f)}, {v(a)}, vcc")
    k(f"v_cvt_f32_u32 {v(f)}, {v(f)}")
    k(f"v_bfrev_b32 {v(ph)}, 1")
    k(f"v_mul_f32 {v(f)}, {v(vInv)}, {v(f)}")
    stepc_trig(vC0, vS0)
    for j in range(4):
        k(f"v_xor_b32_dpp {v(vS1 + j)}, {v(vS0 + j)}, {v(ph)} row_mirror row_mask:0xf bank_mask:0xf")
        k(f"v_xor_b32 {v(vNS0 + j)}, 0x80008000, {v(vS0 + j)}")
    for j in range(4):
        k(f"v_xor_b32_dpp {v(vC1 + j)}, {v(vC0 + j)}, {v(ph)} row_mirror row_mask:0xf bank_mask:0xf")
    oth_loads("mid")
    k(f"s_cmp_eq_u32 {s(sE1)}, 0")
    k("s_cbranch_scc0 SPEKD")
    k(f"v_lshlrev_b32 {v(f)}, 5, {v(vN)}")
    k(f"v_sub_u32 {v(f)}, 1008, {v(f)}")
    k(f"v_cvt_f32_u32 {v(f)}, {v(f)}")
    k(f"v_mul_f32 {v(f)}, {v(vInv)}, {v(f)}")
    stepc_trig(vC1, vS1)
    k("SPEKD:")
    for j in range(4):
        k(f"v_xor_b32 {v(vNC1 + j)}, 0x80008000, {v(vC1 + j)}")
    V.free(arg, 8), V.free(sn, 8)

    vBf = V(8)
    dc = V()
    k(f"v_lshrrev_b32 {v(f)}, 1, {v(vN)}")
    k(f"v_and_b32 {v(ph)}, 1, {v(vN)}")
    k(f"v_cvt_f32_u32 {v(f)}, {v(f)}")
    k(f"v_cvt_f32_u32 {v(a)}, {v(ph)}")
    k(f"v_cmp_gt_u32 vcc, 32, {v(vL)}")
    k(f"v_mov_b32 {v(dc)}, {fl(-0.25)}")
    k(f"v_mul_f32 {v(f)}, {fl(0.125)}, {v(f)}")
    k(f"s_cmp_eq_u32 {s(sQ)}, 0")
    k("s_cbranch_scc0 BFQN")
    k(f"v_lshrrev_b32 {v(a)}, 5, {v(vL)}")
    k(f"v_cmp_eq_u32 s[100:101], {v(a)}, {v(ph)}")
    k(f"v_mul_f32 {v(ph)}, {fl(7.5)}, {v(f)}")
    k(f"v_cndmask_b32 {v(ph)}, {v(ph)}, 0, vcc")
    k(f"v_cndmask_b32 {v(f)}, -{v(f)}, {v(f)}, vcc")
    k(f"v_cndmask_b32 {v(ph)}, -{v(dc)}, {v(ph)}, s[100:101]")
    k(f"v_cndmask_b32 {v(f)}, 0, {v(f)}, s[100:101]")
    k(f"v_cndmask_b32 {v(dc)}, 0, {v(dc)}, s[100:101]")
    k("s_branch BFGO")
    k("BFQN:")
    k(f"v_mul_f32 {v(ph)}, {fl(0.25)}, {v(a)}")
    k(f"v_cndmask_b32 {v(dc)}, -{v(dc)}, {v(dc)}, vcc")
    k("BFGO:")
    k(f"v_cvt_f32_u32 {v(a)}, {v(vG1)}")
    k(f"v_cos_f32 {v(tw)}, {v(f)}")
    k(f"v_mul_f32 {v(a)}, 4.0, {v(a)}")
    k(f"v_fma_f32 {v(vBf)}, {v(f)}, {v(a)}, {v(ph)}")
    k(f"v_add_f32 {v(tw)}, {v(tw)}, {v(tw)}")
    k(f"v_add_f32 {v(vBf + 1)}, {v(vBf)}, {v(f)}")
    k(f"v_add_f32 {v(vBf + 4)}, {v(vBf)}, {v(dc)}")
    k(f"v_add_f32 {v(vBf + 5)}, {v(vBf + 1)}, {v(dc)}")
    for j in (0, 1, 4, 5):
        k(f"v_cos_f32 {v(vBf + j)}, {v(vBf + j)}")
    bf_tail = [x for grp in zip(cheb(vBf, 4, tw), cheb(vBf + 4, 4, tw)) for x in grp]
    V.free(dc)

    vSo, vSt, vA0, vA1, vTd, vTp, vM1, vM2, vCr, vT2a, vT2b, vT2r, vRrd = (V() for _ in range(13))
    k(f"v_add_u32 {v(vSo)}, {s(sLo)}, {v(vL16)}")
    for x in bf_tail:
        k(x)
    V.free(tw)
    k(f"v_xor_b32 {v(vSt)}, 16384, {v(vSo)}")
    k(f"s_lshl_b32 {s(sT)}, {s(sW)}, 11")
    k(f"v_lshl_add_u32 {v(a)}, {v(vG)}, 9, {s(sT)}")
    k(f"v_lshl_add_u32 {v(a)}, {v(vR)}, 6, {v(a)}")
    k(f"v_lshl_add_u32 {v(a)}, {v(vG1)}, 5, {v(a)}")
    k(f"v_lshl_add_u32 {v(vA0)}, {v(vC)}, 3, {v(a)}")
    k(f"v_xor_b32 {v(vA1)}, 32, {v(vA0)}")
    k(f"s_cmp_lt_u32 {s(sW)}, 4")
    k(f"s_cselect_b32 {s(sT)}, 0, 3")
    k(f"s_lshl_b32 {s(sT2)}, {s(sW)}, 6")
    k(f"s_add_u32 {s(sT2)}, {s(sT2)}, {T1}")
    k(f"v_mul_u32_u24 {v(f)}, 1040, {v(vN)}")
    k(f"v_xor_b32 {v(a)}, {s(sT)}, {v(vG)}")
    k(f"v_add_u32 {v(f)}, {s(sT2)}, {v(f)}")
    k(f"v_lshl_add_u32 {v(vTd)}, {v(a)}, 4, {v(f)}")
    k(f"v_xor_b32 {v(a)}, 2, {v(a)}")
    k(f"v_lshl_add_u32 {v(vTp)}, {v(a)}, 4, {v(f)}")
    k(f"s_lshl_b32 {s(sT)}, {s(sW)}, 2")
    k(f"s_add_u32 {s(sT)}, {s(sT)}, {MISC}")
    k(f"v_mov_b32 {v(vM1)}, {s(sT)}")
    k(f"s_lshl_b32 {s(sT2)}, {s(sHF)}, 5")
    k(f"v_add_u32 {v(vM2)}, {s(sT2)}, {v(vM1)}")

    def stepc_addr(f, a):
        k(f"s_mul_i32 {s(sT)}, {s(sW)}, 2080")
        k(f"s_add_u32 {s(sT)}, {s(sT)}, {T1}")
        k(f"v_sub_u32 {v(a)}, 4, {v(vR)}")
        k(f"v_and_b32 {v(a)}, 3, {v(a)}")
        k(f"v_xor_b32 {v(a)}, {v(a)}, {v(vG)}")
        k(f"v_lshl_add_u32 {v(f)}, {v(vN)}, 6, {s(sT)}")
        k(f"v_lshl_add_u32 {v(vCr)}, {v(a)}, 4, {v(f)}")
        k(f"v_lshlrev_b32 {v(vRrd)}, 4, {v(vG)}")
        k(f"v_lshlrev_b32 {v(a)}, 8, {v(vG)}")
        k(f"v_lshl_add_u32 {v(a)}, {v(vN)}, 3, {v(a)}")
        k(f"s_mul_i32 {s(sT)}, {s(sW)}, 1088")
        k(f"s_add_u32 {s(sT)}, {s(sT)}, {T2}")
        k(f"v_add_u32 {v(vT2a)}, {s(sT)}, {v(a)}")
        k(f"s_sub_u32 {s(sT)}, 8, {s(sW)}")
        k(f"s_and_b32 {s(sT)}, {s(sT)}, 7")
        k(f"s_mul_i32 {s(sT)}, {s(sT)}, 1088")
        k(f"s_add_u32 {s(sT)}, {s(sT)}, {T2 + 4}")
        k(f"v_add_u32 {v(vT2b)}, {s(sT)}, {v(a)}")
        k(f"s_lshl_b32 {s(sT)}, {s(sW)}, 7")
        k(f"s_add_u32 {s(sT)}, {s(sT)}, {T2}")
        k(f"v_mul_u32_u24 {v(a)}, 1088, {v(vR)}")
        k(f"v_lshl_add_u32 {v(f)}, {v(vG)}, 2, {v(vC)}")
        k(f"v_add_u32 {v(a)}, {s(sT)}, {v(a)}")
        k(f"v_lshl_add_u32 {v(vT2r)}, {v(f)}, 3, {v(a)}")

    stepc_addr(f, a)
    V.free(f), V.free(ph), V.free(a)
    s1, s2, s3, sw, o1, o2 = (V() for _ in range(6))
    for x in (s1, s2, s3, sw, o1, o2):
        k(f"v_mov_b32 {v(x)}, 0")
    stamp(lg, "consts")
    oth_loads("consts")
    if bar0:
        vm.wait("wr")
        k("s_barrier")
        stamp(lg, "bar0")
        oth_loads("bar0")
        lg.issue(f"ds_read_b128 {v(vWr, 4)}, {v(vL16)} offset:{T2}", "wr0")
        lg.issue(f"ds_read_b128 {v(vWr + 4, 4)}, {v(vL16)} offset:{T2 + 1024}", "wr1")

    vOne, vZr, vCt = V(), V(), V()
    sThr = S()
    if spin:
        k(f"v_mov_b32 {v(vOne)}, 1")
        k(f"v_mov_b32 {v(vZr)}, 0")
        k("s_cmpk_lt_u32 s2, 224")
        k(f"s_cselect_b32 {s(sThr)}, {263 if othl else 7}, 7")

    def meet(i, reads, name):
        if not spin:
            if i:
                lg.all()
            k("s_barrier")
            stamp(lg, name)
            reads(lg.issue)
            return
        early = i in sread
        if i == 0:
            k("s_cmpk_ge_u32 s2, 224")
            k("s_cbranch_scc1 MEETB")
        k("s_mov_b64 exec, 1")
        lg.issue(f"ds_add_rtn_u32 {v(vCt)}, {v(vZr)}, {v(vOne)} offset:{M_CNT + 4 * i}", "ct")
        k("s_mov_b64 exec, -1")
        n0 = lg.n
        if early:
            reads(lg.issue)
        nr = lg.n - n0
        lg.wait("ct")
        k(f"v_readfirstlane_b32 {s(sT)}, {v(vCt)}")
        k(f"s_cmp_eq_u32 {s(sT)}, {s(sThr) if i == 1 else 7}")
        k(f"s_cbranch_scc1 GO{i}")
        if i == 1:
            k(f"s_add_u32 {s(sThr)}, {s(sThr)}, 1")
        k(f"SPIN{i}:")
        k(f"ds_read_b32 {v(vCt)}, {v(vZr)} offset:{M_CNT + 4 * i}")
        if early:
            reads(lambda t, tag=None: k(t))
        k(f"s_waitcnt lgkmcnt({nr})")
        k(f"v_cmp_eq_u32 vcc, {s(sThr) if i == 1 else 8}, {v(vCt)}")
        k(f"s_cbranch_vccz SPIN{i}")
        k(f"GO{i}:")
        stamp(lg, name)
        if not early:
            reads(lg.issue)
        if i == 0:
            late.append("MEETB:")
            late.append("s_barrier")
            if early:
                reads(lambda t, tag=None: late.append(t))
            late.append("s_branch GO0")

    late = []
    xt = V(8)
    Af = [[V(4), V(4)], [V(4), V(4)]]
    vm.wait("own")
    stamp(lg, "x_in")
    oth_loads("x_in")
    V.free(vXo)
    lg.issue(f"ds_write_b128 {v(vSo)}, {v(xo, 4)}")
    lg.issue(f"ds_write_b128 {v(vSo)}, {v(xo + 4, 4)} offset:1024")
    for j in range(8):
        k(f"v_dot2c_f32_bf16 {v(s1)}, 0x3f803f80, {v(xo + j)}")
        k(f"v_dot2c_f32_bf16 {v(s2)}, {v(xo + j)}, {v(xo + j)}")
        if bar0b and j == P.get("b0at", 1):
            def wr_reads(issue):
                issue(f"ds_read_b128 {v(vWr, 4)}, {v(vL16)} offset:{T2}", "wr0")
                issue(f"ds_read_b128 {v(vWr + 4, 4)}, {v(vL16)} offset:{T2 + 1024}", "wr1")
            meet(0, wr_reads, "bar0")
    for j in range(8):
        if j % 4 == 0:
            lg.wait(f"wr{j // 4}") if wrl else vm.wait("wr")
        k(f"v_dot2c_f32_bf16 {v(sw)}, 0x3f803f80, {v(vWr + j)}")
        k(f"v_dot2c_f32_bf16 {v(s3)}, {v(xo + j)}, {v(vWr + j)}")
    k(f"v_permlane32_swap_b32 {v(s1)}, {v(s2)}")
    k(f"v_permlane32_swap_b32 {v(s3)}, {v(sw)}")
    k(f"v_add_f32 {v(s1)}, {v(s1)}, {v(s2)}")
    k(f"v_add_f32 {v(s3)}, {v(s3)}, {v(sw)}")
    k(f"v_permlane16_swap_b32 {v(s1)}, {v(s3)}")
    k(f"v_add_f32 {v(s1)}, {v(s1)}, {v(s3)}")
    for sh in (8, 4, 2, 1):
        k(f"v_add_f32_dpp {v(s1)}, {v(s1)}, {v(s1)} row_ror:{sh} row_mask:0xf bank_mask:0xf")
    q1, q2, q3, q4 = (S() for _ in range(4))
    stamp(lg, "red")
    k(f"v_readlane_b32 {s(q1)}, {v(s1)}, 0")
    k(f"v_readlane_b32 {s(q2)}, {v(s1)}, 32")
    k(f"v_readlane_b32 {s(q3)}, {v(s1)}, 16")
    k(f"v_readlane_b32 {s(q4)}, {v(s1)}, 48")
    mo, ro = V(), V()
    k(f"v_mul_f32 {v(mo)}, {s(q1)}, {v(vInv)}")
    k(f"v_mul_f32 {v(s2)}, {s(q2)}, {v(vInv)}")
    k(f"v_mov_b32 {v(s3)}, {s(q3)}")
    k(f"v_fma_f32 {v(s2)}, -{v(mo)}, {v(mo)}, {v(s2)}")
    k(f"v_fma_f32 {v(s3)}, -{v(mo)}, {s(q4)}, {v(s3)}")
    k(f"v_max_f32 {v(s2)}, 0, {v(s2)}")
    k(f"v_add_f32 {v(s2)}, {fl(1e-5)}, {v(s2)}")
    k(f"v_rsq_f32 {v(ro)}, {v(s2)}")
    k(f"v_mul_f32 {v(s3)}, {v(s3)}, {v(ro)}")
    k(f"v_ashrrev_i32 {v(s2)}, 31, {v(s3)}")
    k(f"v_or_b32 {v(s2)}, 0x80000000, {v(s2)}")
    k(f"v_xor_b32 {v(s2)}, {v(s3)}, {v(s2)}")
    k(f"v_and_b32 {v(s2)}, 0xfffff800, {v(s2)}")
    k(f"v_or_b32 {v(s2)}, {s(sOwn)}, {v(s2)}")
    k("s_mov_b64 exec, 1")
    lg.issue(f"ds_write2_b32 {v(vM1)}, {v(s2)}, {v(mo)} offset0:16 offset1:40")
    lg.issue(f"ds_write_b32 {v(vM2)}, {v(ro)}", "key")
    k("s_mov_b64 exec, -1")
    stamp(lg, "key")

    def a_reads(issue):
        if bar1a:
            k("s_barrier")
        if othl:
            k("s_waitcnt vmcnt(0)")
        else:
            vm.wait("oth")
        stamp(lg, "oth")
        issue(f"ds_read_b128 {v(xt, 4)}, {v(vSt)}")
        issue(f"ds_read_b128 {v(xt + 4, 4)}, {v(vSt)} offset:1024", "xt")
        for row in range(2):
            for half in range(2):
                for h in range(2):
                    issue(f"ds_read_b64_tr_b16 {v(Af[row][half] + 2 * h, 2)}, {v(vA1 if half else vA0)} offset:{row * 16384 + h * 256}", f"af{row}{half}")

    assert 1 not in sread
    meet(1, a_reads, "bar1")
    lg.wait("xt")
    for j in range(8):
        k(f"v_dot2c_f32_bf16 {v(o1)}, 0x3f803f80, {v(xt + j)}")
        k(f"v_dot2c_f32_bf16 {v(o2)}, {v(xt + j)}, {v(xt + j)}")
    k(f"v_permlane32_swap_b32 {v(o1)}, {v(o2)}")
    Ci = [V(4), V(4)]
    for j in range(4):
        k(f"v_mul_f32 {v(Ci[0] + j)}, {v(vMk)}, {v(mo)}")
    k(f"v_add_f32 {v(o1)}, {v(o1)}, {v(o2)}")
    k(f"v_mov_b32 {v(o2)}, {v(o1)}")
    Da = [[V(4), V(4)], [V(4), V(4)]]
    lg.wait("af01")
    k(f"v_mfma_f32_16x16x32_bf16 {v(Da[0][0], 4)}, {v(Af[0][0], 4)}, {v(vKA, 4)}, {v(Ci[0], 4)}")
    k(f"v_permlane16_swap_b32 {v(o1)}, {v(o2)}")
    k(f"v_mfma_f32_16x16x32_bf16 {v(Da[0][1], 4)}, {v(Af[0][1], 4)}, {v(vKA, 4)}, {v(Ci[0], 4)}")
    k(f"v_add_f32 {v(o1)}, {v(o1)}, {v(o2)}")
    for sh in (8, 4, 2, 1):
        k(f"v_add_f32_dpp {v(o1)}, {v(o1)}, {v(o1)} row_ror:{sh} row_mask:0xf bank_mask:0xf")
    k(f"v_readlane_b32 {s(q1)}, {v(o1)}, 0")
    k(f"v_readlane_b32 {s(q2)}, {v(o1)}, 32")
    pk = V(4)
    for half in range(2):
        for j in range(2):
            k(f"v_cvt_pk_bf16_f32 {v(pk + 2 * half + j)}, {v(Da[0][half] + 2 * j)}, {v(Da[0][half] + 2 * j + 1)}")
    k(f"v_mul_f32 {v(o1)}, {s(q1)}, {v(vInv)}")
    k(f"v_mul_f32 {v(o2)}, {s(q2)}, {v(vInv)}")
    lg.issue(f"ds_write_b128 {v(vTd)}, {v(pk, 4)}")
    for j in range(4):
        k(f"v_mul_f32 {v(Ci[1] + j)}, {v(vMk)}, {v(o1)}")
    k(f"v_fma_f32 {v(o2)}, -{v(o1)}, {v(o1)}, {v(o2)}")
    lg.wait("af11")
    k(f"v_mfma_f32_16x16x32_bf16 {v(Da[1][0], 4)}, {v(Af[1][0], 4)}, {v(vKA, 4)}, {v(Ci[1], 4)}")
    k(f"v_mfma_f32_16x16x32_bf16 {v(Da[1][1], 4)}, {v(Af[1][1], 4)}, {v(vKA, 4)}, {v(Ci[1], 4)}")
    k(f"v_max_f32 {v(o2)}, 0, {v(o2)}")
    k(f"v_add_f32 {v(o2)}, {fl(1e-5)}, {v(o2)}")
    k(f"v_rsq_f32 {v(o2)}, {v(o2)}")
    k(f"v_xor_b32 {v(vM2)}, 32, {v(vM2)}")
    k("s_mov_b64 exec, 1")
    lg.issue(f"ds_write_b32 {v(vM2)}, {v(o2)}")
    k("s_mov_b64 exec, -1")
    pk2 = V(4)
    for half in range(2):
        for j in range(2):
            k(f"v_cvt_pk_bf16_f32 {v(pk2 + 2 * half + j)}, {v(Da[1][half] + 2 * j)}, {v(Da[1][half] + 2 * j + 1)}")
    lg.issue(f"ds_write_b128 {v(vTp)}, {v(pk2, 4)} offset:512")
    Ar, Ai, Rs = V(4), V(4), V(4)

    def c_reads(issue):
        issue(f"ds_read_b128 {v(Ar, 4)}, {v(vCr)}", "ar")
        issue(f"ds_read_b128 {v(Ai, 4)}, {v(vCr)} offset:1040", "ai")
        issue(f"ds_read_b128 {v(Rs, 4)}, {v(vRrd)} offset:{M_RS}", "rs")

    meet(2, c_reads, "bar1b")
    for x in (s1, s2, s3, sw, o1, o2, mo, ro, vMk, vSo, vSt, vA0, vA1, vTd, vTp, vM1, vM2, vG4f, vInv):
        V.free(x)
    for x in (xo, xt, vWr):
        V.free(x, 8)
    for x in (Af[0][0], Af[0][1], Af[1][0], Af[1][1], Da[0][0], Da[0][1], Da[1][0], Da[1][1], Ci[0], Ci[1], pk, pk2, vKA):
        V.free(x, 4)

    Xr0, Xi0, Xr1, Xi1 = (V(4) for _ in range(4))

    def mf(d, a_, b_, c_=None):
        k(f"v_mfma_f32_16x16x32_bf16 {v(d, 4)}, {v(a_, 4)}, {v(b_, 4)}, {v(c_, 4) if c_ is not None else 0}")

    lg.wait("ai")
    k(f"s_cmp_eq_u32 {s(sE1)}, 0")
    mf(Xr0, Ar, vC0), mf(Xi0, Ar, vNS0)
    k("s_cbranch_scc0 SPECN")
    mf(Xr1, Ai, vC1), mf(Xi1, Ai, vS1)
    k("s_branch SPECD")
    k("SPECN:")
    mf(Xr1, Ar, vC1), mf(Xi1, Ar, vS1)
    mf(Xr0, Ai, vS0, Xr0), mf(Xi0, Ai, vC0, Xi0), mf(Xr1, Ai, vS1, Xr1), mf(Xi1, Ai, vNC1, Xi1)
    k("SPECD:")
    lg.wait("rs")
    for j in range(8):
        k(f"v_mul_f32 {v(vBf + j)}, {v(vBf + j)}, {v(Rs + (j & 3))}")
    Bq, B0, B1 = V(4), V(4), V(4)
    for j in range(4):
        k(f"v_cvt_pk_bf16_f32 {v(Bq + j)}, {v(vBf + 2 * j)}, {v(vBf + 2 * j + 1)}")
    for dst, xr, xi in ((B0, Xr0, Xi0), (B1, Xr1, Xi1)):
        for j in range(2):
            k(f"v_cvt_pk_bf16_f32 {v(dst + j)}, {v(xr + 2 * j)}, {v(xr + 2 * j + 1)}")
        for j in range(2):
            k(f"v_cvt_pk_bf16_f32 {v(dst + 2 + j)}, {v(xi + 2 * j)}, {v(xi + 2 * j + 1)}")
        mf(Ar if dst == B0 else Ai, Bq, dst)
    for dst, src, adr in ((B0, Ar, vT2a), (B1, Ai, vT2b)):
        k(f"v_cvt_pk_bf16_f32 {v(dst)}, {v(src)}, {v(src + 1)}")
        k(f"v_cvt_pk_bf16_f32 {v(dst + 1)}, {v(src + 2)}, {v(src + 3)}")
        lg.issue(f"ds_write2_b32 {v(adr)}, {v(dst)}, {v(dst + 1)} offset1:32")

    def u_reads(issue):
        issue(f"ds_read_b64_tr_b16 {v(Bq, 2)}, {v(vT2r)}")
        issue(f"ds_read_b64_tr_b16 {v(Bq + 2, 2)}, {v(vT2r)} offset:4352")

    meet(3, u_reads, "bar2")
    V.free(vOne), V.free(vZr), V.free(vCt), S.free(sThr)
    sBlk, sHalf, sUt, sUe = (S() for _ in range(4))
    vT, vTm, vOd, vOm, vSd, vSm = (V() for _ in range(6))
    a, b = V(), V()
    k(f"s_and_b32 {s(sBlk)}, {s(sU)}, 15")
    k(f"s_lshr_b32 {s(sHalf)}, {s(sU)}, 4")
    k(f"s_lshl3_add_u32 {s(sT)}, {s(sHalf)}, {s(sW)}")
    k(f"s_lshl_b32 {s(sT)}, {s(sT)}, 7")
    k(f"s_add_u32 {s(sT)}, {s(sT)}, {s(sX8)}")
    k(f"v_lshl_add_u32 {v(vT)}, {v(vN)}, 3, {s(sT)}")
    k(f"v_sub_u32 {v(vTm)}, 2048, {v(vT)}")
    k(f"v_and_b32 {v(vTm)}, 2047, {v(vTm)}")
    lg.all()
    vm.issue(f"buffer_store_dwordx4 {v(Bq, 4)}, {v(vL16)}, {WS}, {s(sUs)} offen sc1")
    stamp(lg, "ust")

    def pollwait(at):
        if P.get("pollwait") and P["pw_at"] == at:
            k("s_barrier")

    pollwait("ust")
    k(f"s_lshl_b32 {s(sT)}, {s(sBlk)}, 6")
    k(f"v_lshl_add_u32 {v(a)}, {v(vG)}, 4, {s(sT)}")
    k(f"v_lshl_add_u32 {v(vOd)}, {v(vT)}, 11, {v(a)}")
    k(f"v_sub_u32 {v(a)}, 2032, {v(a)}")
    k(f"v_lshl_add_u32 {v(vOm)}, {v(vTm)}, 11, {v(a)}")
    xd, xm = V(4), V(4)

    def res_loads(at):
        if P["res_at"] == at:
            vm.issue(f"buffer_load_dwordx4 {v(xd, 4)}, {v(vOd)}, {X}, 0 offen", "resd")
            vm.issue(f"buffer_load_dwordx4 {v(xm, 4)}, {v(vOm)}, {X}, 0 offen", "res")

    res_loads("ust")
    for x in (q1, q2, q3, q4, sOwn, sOth, sLo, sE1, sUs):
        S.free(x)
    for x in (Ar, Ai, Rs, Xr0, Xi0, Xr1, Xi1, B0, B1, vC0, vS0, vNS0, vC1, vS1, vNC1):
        V.free(x, 4)
    V.free(vBf, 8)
    for x in (vCr, vT2a, vT2b, vT2r, vRrd):
        V.free(x)
    for dst, src in ((vSd, vT), (vSm, vTm)):
        stat_addr(dst, src, a, b)

    K2 = V(32)
    f, tw = V(), V()
    cs = [[V(4), V(4)], [V(4), V(4)]]
    k(f"v_cvt_f32_u32 {v(f)}, {v(vT)}")
    k(f"v_lshrrev_b32 {v(a)}, 5, {v(vL)}")
    k(f"v_add_u32 {v(b)}, {v(vG1)}, {v(vG1)}")
    k(f"v_lshl_add_u32 {v(a)}, {v(a)}, 3, {v(b)}")
    k(f"v_mul_f32 {v(f)}, {fl(1 / 2048)}, {v(f)}")
    k(f"v_cvt_f32_u32 {v(a)}, {v(a)}")
    k(f"v_mul_f32 {v(b)}, {fl(16.0)}, {v(f)}")
    c0, c1 = cs[0][0], cs[1][0]
    k(f"v_mul_f32 {v(c0)}, {v(f)}, {v(a)}")
    k(f"v_cos_f32 {v(tw)}, {v(b)}")
    k(f"v_add_f32 {v(c0 + 1)}, {v(c0)}, {v(f)}")
    k(f"v_fma_f32 {v(c0 + 2)}, {v(f)}, 4.0, {v(c0)}")
    k(f"v_fma_f32 {v(c0 + 3)}, {v(f)}, 4.0, {v(c0 + 1)}")
    k(f"v_add_f32 {v(tw)}, {v(tw)}, {v(tw)}")
    for j in range(4):
        k(f"v_add_f32 {v(c1 + j)}, {v(c0 + j)}, {v(b)}")
    for gen_ in range(2):
        for j in range(4):
            k(f"v_sin_f32 {v(cs[gen_][1] + j)}, {v(cs[gen_][0] + j)}")
            k(f"v_cos_f32 {v(cs[gen_][0] + j)}, {v(cs[gen_][0] + j)}")
    for ks in range(8):
        cur, nxt = cs[ks & 1], cs[(ks + 1) & 1]
        for j in range(4):
            k(f"v_cvt_pk_bf16_f32 {v(K2 + 4 * ks + j)}, {v(cur[0] + j)}, {v(cur[1] + j)}")
            if ks < 6:
                for h in range(2):
                    k(f"v_fma_f32 {v(cur[h] + j)}, {v(tw)}, {v(nxt[h] + j)}, -{v(cur[h] + j)}")
    k(f"v_and_b32 {v(a)}, 1, {v(vN)}")
    k(f"v_cmp_gt_u32 vcc, 16, {v(vL)}")
    k(f"v_lshlrev_b32 {v(a)}, 31, {v(a)}")
    k(f"v_or_b32 {v(a)}, 0x3f803f80, {v(a)}")
    k(f"v_cndmask_b32 {v(K2)}, {v(K2)}, {v(a)}, vcc")
    stamp(lg, "k2")
    pollwait("k2")
    V.free(f), V.free(tw)
    for x in cs[0] + cs[1]:
        V.free(x, 4)
    V.free(Bq, 4)

    vUo, vUe, vIa, vIb, vIe, vIr, vSa, vSb = (V() for _ in range(8))
    sUb = S()
    k(f"s_lshl_b32 {s(sT)}, {s(sX8)}, 10")
    k(f"s_mul_i32 {s(sT2)}, {s(sW)}, {16 * UQS}")
    k(f"s_add_u32 {s(sT)}, {s(sT)}, {s(sT2)}")
    k(f"s_lshl_b32 {s(sUt)}, {s(sBlk)}, 6")
    k(f"s_add_u32 {s(sUe)}, {s(sUt)}, {0 if P.get('noue') else 64}")
    k(f"s_add_u32 {s(sUt)}, {s(sUt)}, {s(sT)}")
    k(f"s_and_b32 {s(sUe)}, {s(sUe)}, 1023")
    k(f"s_add_u32 {s(sUb)}, {s(sUt)}, {0 if P.get('noue') == 2 else 8192}")
    k(f"s_add_u32 {s(sUe)}, {s(sUe)}, {s(sT)}")
    ql, l1, tt = V(), V(), V()
    k(f"v_lshrrev_b32 {v(ql)}, 2, {v(vL)}")
    k(f"v_and_b32 {v(l1)}, 1, {v(vL)}")
    k(f"v_bfe_u32 {v(tt)}, {v(vL)}, 1, 1")
    k(f"v_mul_u32_u24 {v(a)}, {UQS}, {v(ql)}")
    k(f"v_lshl_add_u32 {v(vUo)}, {v(vC)}, 4, {v(a)}")
    k(f"v_lshl_add_u32 {v(vUe)}, {v(l1)}, 4, {v(a)}")
    k(f"s_mul_i32 {s(sT)}, {s(sW)}, {32 * 96}")
    k(f"v_lshl_add_u32 {v(a)}, {v(ql)}, 1, {v(l1)}")
    k(f"v_mul_u32_u24 {v(a)}, 96, {v(a)}")
    k(f"v_add_u32 {v(vIe)}, {s(sT)}, {v(a)}")
    k(f"v_mad_u32_u24 {v(vIa)}, {v(tt)}, 24, {v(vIe)}")
    k(f"v_lshl_add_u32 {v(vIb)}, {v(tt)}, 3, {v(vIe)}")
    if P["xc"]:
        vXr = V()
        k(f"s_lshl_b32 {s(sT)}, {s(sW)}, 4")
        k(f"v_and_b32 {v(a)}, 1, {v(ql)}")
        k(f"v_lshl_add_u32 {v(a)}, {v(a)}, 1, {v(l1)}")
        k(f"v_lshl_add_u32 {v(a)}, {v(vG1)}, 2, {v(a)}")
        k(f"v_lshl_add_u32 {v(vIe)}, {v(a)}, 1, {s(sT)}")
        k(f"v_bfe_u32 {v(a)}, {v(vL)}, 3, 1")
        k(f"v_lshrrev_b32 {v(b)}, 5, {v(vL)}")
        k(f"v_lshl_add_u32 {v(a)}, {v(b)}, 1, {v(a)}")
        k(f"v_lshl_add_u32 {v(vIe)}, {v(a)}, 7, {v(vIe)}")
        k(f"v_sub_u32 {v(a)}, 15, {v(vN)}")
        k(f"v_lshlrev_b32 {v(a)}, 4, {v(a)}")
        k(f"v_lshl_add_u32 {v(vXr)}, {v(vG)}, 7, {v(a)}")
    k(f"v_lshrrev_b32 {v(a)}, 5, {v(vL)}")
    k(f"v_lshl_add_u32 {v(b)}, {v(vG1)}, 2, {v(vR)}")
    k(f"v_lshl_add_u32 {v(a)}, {v(a)}, 4, {v(b)}")
    k(f"v_mul_u32_u24 {v(a)}, 96, {v(a)}")
    k(f"v_lshl_add_u32 {v(vIr)}, {v(vC)}, 3, {v(a)}")
    k(f"s_cmp_eq_u32 {s(sBlk)}, 0")
    k(f"s_cselect_b32 {s(sT)}, 0x0908, 0")
    k(f"s_xor_b32 {s(sT)}, {s(sT)}, 0x07060504")
    k(f"v_cmp_eq_u32 vcc, 1, {v(tt)}")
    k(f"v_mov_b32 {v(a)}, 0x07060100")
    k(f"v_mov_b32 {v(vSb)}, 0x07060504")
    k(f"v_mov_b32 {v(vSa)}, {s(sT)}")
    k(f"v_cndmask_b32 {v(vSb)}, {v(vSb)}, {v(a)}, vcc")
    k(f"v_cndmask_b32 {v(vSa)}, {v(vSa)}, {v(a)}, vcc")
    vGU, vDn, vHw, vHr, vPo = (V() for _ in range(5))
    sHw, sHr, sPo, sSt, sCnt = (S() for _ in range(5))
    sN2 = S(2)
    k(f"v_lshrrev_b32 {v(a)}, 1, {v(vR)}")
    k(f"v_lshl_add_u32 {v(a)}, {v(vG1)}, 1, {v(a)}")
    k(f"v_lshlrev_b32 {v(b)}, 10, {v(vG)}")
    k(f"v_lshl_add_u32 {v(b)}, {v(vR)}, 7, {v(b)}")
    k(f"v_lshl_add_u32 {v(b)}, {v(vC)}, 3, {v(b)}")
    k(f"v_lshl_add_u32 {v(b)}, {v(a)}, 5, {v(b)}")
    k(f"s_lshl_b32 {s(sT)}, {s(sW)}, 12")
    k(f"s_add_u32 {s(sT)}, {s(sT)}, {WBASE + 65536}")
    k(f"v_add_u32 {v(vDn)}, {s(sT)}, {v(b)}")
    k(f"s_and_b32 {s(sT)}, {s(sW)}, 3")
    k(f"s_lshl_b32 {s(sT)}, {s(sT)}, 5")
    k(f"v_xor_b32 {v(b)}, {s(sT)}, {v(b)}")
    k(f"s_lshr_b32 {s(sT2)}, {s(sW)}, 2")
    k(f"s_lshl_b32 {s(sT)}, {s(sT2)}, 15")
    k(f"s_add_u32 {s(sT)}, {s(sT)}, {WBASE}")
    k(f"v_add_u32 {v(vGU)}, {s(sT)}, {v(b)}")
    k(f"v_lshlrev_b32 {v(a)}, 4, {v(l1)}")
    k(f"v_lshl_add_u32 {v(vHw)}, {v(vG)}, 5, {v(a)}")
    k(f"s_lshl_b32 {s(sHr)}, {s(sCb)}, 12")
    k(f"s_add_u32 {s(sHr)}, {s(sHr)}, {W_HX}")
    k(f"s_lshl_b32 {s(sT)}, {s(sPart)}, 9")
    k(f"s_add_u32 {s(sHw)}, {s(sHr)}, {s(sT)}")
    k(f"s_lshl_b32 {s(sT)}, {s(sT2)}, 8")
    k(f"s_add_u32 {s(sHw)}, {s(sHw)}, {s(sT)}")
    k(f"s_bfe_u32 {s(sT)}, {s(sW)}, 0x10001")
    k(f"s_lshl_b32 {s(sT)}, {s(sT)}, 11")
    k(f"s_add_u32 {s(sHw)}, {s(sHw)}, {s(sT)}")
    k(f"s_and_b32 {s(sT)}, {s(sW)}, 1")
    k(f"s_lshl_b32 {s(sT)}, {s(sT)}, 7")
    k(f"s_add_u32 {s(sHw)}, {s(sHw)}, {s(sT)}")
    if P["ush"]:
        k(f"s_cmpk_ge_u32 s2, {32 * (7 - P['ush'])}")
        k(f"s_cselect_b32 {s(sT)}, {P['ush'] - 7}, {P['ush']}")
        k(f"s_mul_i32 {s(sT)}, {s(sT)}, {s(sT2)}")
        k(f"s_lshl_b32 {s(sT)}, {s(sT)}, 12")
        k(f"s_add_u32 {s(sHw)}, {s(sHw)}, {s(sT)}")
    k("s_cmp_lt_u32 s2, 224")
    k(f"s_cselect_b32 {s(sHw)}, {s(sHw)}, {OOB}")
    k(f"s_lshl_b32 {s(sT)}, {s(sT2)}, 11")
    k(f"s_add_u32 {s(sHr)}, {s(sHr)}, {s(sT)}")
    k(f"v_lshl_add_u32 {v(a)}, {v(tt)}, 8, {v(a)}")
    k(f"v_lshl_add_u32 {v(a)}, {v(vG)}, 6, {v(a)}")
    k(f"v_and_b32 {v(b)}, 1, {v(vR)}")
    k(f"v_lshl_add_u32 {v(a)}, {v(b)}, 5, {v(a)}")
    k(f"v_lshrrev_b32 {v(b)}, 1, {v(vR)}")
    k(f"v_lshl_add_u32 {v(vHr)}, {v(b)}, 10, {v(a)}")
    k(f"v_mul_u32_u24 {v(a)}, {32 * 7168}, {v(l1)}")
    k(f"v_lshl_add_u32 {v(a)}, {v(vG1)}, 5, {v(a)}")
    k(f"v_lshrrev_b32 {v(b)}, 5, {v(vL)}")
    k(f"v_lshl_add_u32 {v(vPo)}, {v(b)}, 4, {v(a)}")
    k(f"s_and_b32 {s(sT)}, {s(sW)}, 3")
    k(f"s_lshl2_add_u32 {s(sT)}, {s(sPart)}, {s(sT)}")
    k(f"s_mul_i32 {s(sPo)}, {s(sT)}, {2 * 7168}")
    k(f"s_lshl1_add_u32 {s(sT)}, {s(sCb)}, {s(sT2)}")
    k(f"s_lshl_b32 {s(sT)}, {s(sT)}, 6")
    k(f"s_add_u32 {s(sPo)}, {s(sPo)}, {s(sT)}")
    k(f"s_add_u32 {s(sPo)}, {s(sPo)}, {W_PART}")
    V.free(ql), V.free(l1), V.free(tt)
    S.free(sBlk), S.free(sHalf)
    k(f"s_mov_b32 {s(sN2)}, 0x00030003")
    k(f"s_mov_b32 {s(sN2 + 1)}, 0x00030003")
    k(f"s_mov_b32 {s(sSt)}, {W_STATS}")
    k(f"s_mov_b32 {s(sCnt)}, 0")
    k("s_mov_b32 s26, s6")
    k("s_mov_b32 s27, s7")
    for x in (sSl, sRP, sQ, sHF, sU, sX8, sPart, sCb):
        S.free(x)
    stamp(lg, "addr")
    zero_rest(15)
    UA, UB, UE, Sd, Sm, rows = V(4), V(4), V(), V(2), V(2), V(2)
    xb = V(32)
    order = P["order"]
    assert order == "C" or not P["bar6"]

    def tile_loads(issue, tag=None, part=None, first=None):
        sc = " " + P["tsc"] if (tag if first is None else first) else " sc1"
        q = [f"buffer_load_dwordx4 {v(UA, 4)}, {v(vUo)}, {WS}, {s(sUt)} offen{sc}",
             f"buffer_load_dwordx4 {v(UB, 4)}, {v(vUo)}, {WS}, {s(sUb)} offen{sc}",
             f"buffer_load_dword {v(UE)}, {v(vUe)}, {WS}, {s(sUe)} offen{sc}",
             f"buffer_load_dwordx2 {v(Sd, 2)}, {v(vSd)}, {WS}, {s(sSt)} offen sc1",
             f"buffer_load_dwordx2 {v(Sm, 2)}, {v(vSm)}, {WS}, {s(sSt)} offen sc1"]
        q = q[:P["tn"]] if part == 0 else q[P["tn"]:] if part == 1 else q
        for x in q[:-1]:
            issue(x)
        if q:
            issue(q[-1], tag) if tag else issue(q[-1])

    def hook(at):
        res_loads(at)
        if P["tile_at"] == at:
            if order == "E":
                tile_loads(vm.issue, part=0, first=True)
            else:
                tile_loads(vm.issue, "tile")

    vd, vmr = (None, None) if P["late_res"] else (V(8), V(8))

    def res_unpack():
        nonlocal vd, vmr
        if vd is None:
            vd, vmr = V(8), V(8)
        vm.wait("res")
        for dst, src in ((vd, xd), (vmr, xm)):
            for j in range(4):
                k(f"v_lshlrev_b32 {v(dst + 2 * j)}, 16, {v(src + j)}")
                k(f"v_and_b32 {v(dst + 2 * j + 1)}, 0xffff0000, {v(src + j)}")
        V.free(xd, 4), V.free(xm, 4)

    assert P["tile_at"] in ("fin", "got", "gu", "pst")
    assert P["res_at"] in ("ust", "pre3", "fin", "got", "gu", "bar5", "hx", "hok", "pst") and (order == "B" or P["tile_at"] != "pst")
    late_res = P["late_res"]
    assert late_res or P["res_at"] not in ("bar5", "hx", "hok", "pst")
    early_res = P["res_at"] == "ust" and P.get("res_early", True) and not late_res
    res_loads("pre3")
    if early_res:
        res_unpack()
    k(f"v_mov_b32 {v(a)}, 0")
    stamp(lg, "pre3")
    site("B", "pre3")
    lg.all()
    pollwait("pre3")
    if P["fin"]:
        k("s_barrier")
        stamp(lg, "barD")
        hook("fin")
        if P["fq"]:
            k("s_cmpk_lt_u32 s2, 224")
            k("s_cbranch_scc1 NOFQ")
            tile_loads(k, first=P["fq"] == 1)
            k(f"buffer_load_dwordx4 {v(xd, 4)}, {v(vOd)}, {X}, 0 offen")
            k(f"buffer_load_dwordx4 {v(xm, 4)}, {v(vOm)}, {X}, 0 offen")
            k("NOFQ:")
    k("s_barrier")
    k(";@R B")
    stamp(lg, "bar3")

    Wf = [V(4) for _ in range(4)]
    aG = [V(4), V(4)]

    def gureads(ks):
        for hj in range(2):
            lg.issue(f"ds_read_b64_tr_b16 {v(Wf[ks & 3] + 2 * hj, 2)}, {v(vGU)} offset:{ks * 4096 + hj * 512}", f"w{ks}")

    lg.issue(f"ds_read_b128 {v(xb, 4)}, {v(vL16)} offset:{M_XN}", "xb")
    gureads(0)
    lg.issue(f"ds_read_b64 {v(rows, 2)}, {v(a)} offset:{M_SEL}", "rows")
    for ks in range(1, 4):
        gureads(ks)
    hook("got")
    V.free(vL16)
    sd0, sm0, sm1 = (S(2) for _ in range(3))
    vFd, vFm = vT, vTm
    fill = [
        f"v_cmp_eq_u32 {s(sd0, 2)}, {v(vT)}, {v(rows)}",
        f"v_cmp_eq_u32 vcc, {v(vT)}, {v(rows + 1)}",
        f"v_cmp_eq_u32 {s(sm0, 2)}, {v(vTm)}, {v(rows)}",
        f"v_cmp_eq_u32 {s(sm1, 2)}, {v(vTm)}, {v(rows + 1)}",
        f"v_lshlrev_b32 {v(b)}, 5, {v(vG)}",
        f"v_cndmask_b32 {v(vFd)}, 0, 64, vcc",
        f"v_cndmask_b32 {v(vFm)}, 0, 64, {s(sm1, 2)}",
        f"s_or_b64 {s(sd0, 2)}, {s(sd0, 2)}, vcc",
        f"s_or_b64 {s(sm0, 2)}, {s(sm0, 2)}, {s(sm1, 2)}",
        f"v_lshl_add_u32 {v(vFd)}, {v(vFd)}, 1, {v(b)}",
        f"v_sub_u32 {v(b)}, 96, {v(b)}",
        f"v_lshl_add_u32 {v(vFm)}, {v(vFm)}, 1, {v(b)}",
    ]
    if P["fs"]:
        k("s_cmpk_ge_u32 s2, 224")
        k("s_cbranch_scc1 FSKIP")
    lg.wait("xb")
    stamp(lg, "xb")
    for ks in range(8):
        if ks + 1 < 8:
            for j in range(4):
                k(f"v_mov_b32_dpp {v(xb + 4 * ks + 4 + j)}, {v(xb + j)} row_shl:{2 * ks + 2} row_mask:0xf bank_mask:0xf")
        lg.wait(f"w{ks}")
        mf(aG[ks & 1], Wf[ks & 3], xb + 4 * ks, aG[ks & 1] if ks > 1 else None)
        if ks + 4 < 8:
            gureads(ks + 4)
    if P["fs"]:
        assert lg.done == lg.n
        k("GUE:")
    for x in fill[:7]:
        k(x)
    for j in range(4):
        k(f"v_add_f32 {v(aG[0] + j)}, {v(aG[0] + j)}, {v(aG[1] + j)}")
    k(f"s_mov_b64 exec, {s(sN2, 2)}")
    vm.issue(f"buffer_store_dwordx4 {v(aG[0], 4)}, {v(vHw)}, {WS}, {s(sHw)} offen sc1")
    k("s_mov_b64 exec, -1")
    stamp(lg, "gu")
    V.free(xb, 32)
    H0, H1 = V(4), V(4)

    def hx_loads(issue, tag=None):
        sc = " " + P["hsc"] if tag else " sc1"
        issue(f"buffer_load_dwordx4 {v(H0, 4)}, {v(vHr)}, {WS}, {s(sHr)} offen{sc}")
        last = f"buffer_load_dwordx4 {v(H1, 4)}, {v(vHr)}, {WS}, {s(sHr)} offen offset:512{sc}"
        issue(last, tag) if tag else issue(last)

    if P["barg"]:
        k("s_barrier")
    if P["fq"]:
        k("s_cmpk_ge_u32 s2, 224")
        k("s_cbranch_scc1 NOTL")
    hook("gu")
    if P["fq"]:
        assert P["hx_at"] == -2 and P["tile_at"] == "gu" and order == "D" and P["res_at"] == "hok"
        k("NOTL:")
    quick = order == "D" and P["res_at"] in ("hok", "pst", "bar5") and P["hx_at"] in (-2, -3, -4) and P["tile_at"] == "gu"
    if quick and P["res_at"] != "bar5" and not P["fq"]:
        k("s_cmpk_lt_u32 s2, 224")
        k("s_cbranch_scc1 NORES")
        k(f"buffer_load_dwordx4 {v(xd, 4)}, {v(vOd)}, {X}, 0 offen")
        k(f"buffer_load_dwordx4 {v(xm, 4)}, {v(vOm)}, {X}, 0 offen")
        k("NORES:")
    if P["hx_at"] == -1:
        hx_loads(vm.issue, "hx")
        res_loads("hx")
    for x in fill[7:]:
        k(x)
    if P["hx_at"] == -4 and order != "E":
        assert quick and P["res_at"] in ("hok", "pst")
        k("s_cmpk_ge_u32 s2, 224")
        k("s_barrier")
        k("s_cbranch_scc1 NOHX")
        hx_loads(vm.issue, "hx")
        k("NOHX:")
    if P["hx_at"] == -3:
        assert quick and P["res_at"] in ("hok", "pst")
        k("s_cmpk_ge_u32 s2, 224")
        k("s_cbranch_scc1 NOHX")
        k(f"v_mov_b32 {v(b)}, 0")
        k("DSP:")
        k(f"ds_read_b32 {v(a)}, {v(b)} offset:{M_DFL}")
        k(f"s_add_u32 {s(sCnt)}, {s(sCnt)}, 1")
        k(f"s_cmp_ge_u32 {s(sCnt)}, {SPIN * 16}")
        k("s_cbranch_scc1 DSG")
        k("s_waitcnt lgkmcnt(0)")
        k(f"v_cmp_eq_u32 vcc, 0, {v(a)}")
        k("s_cbranch_vccz DSP")
        k("DSG:")
        k("s_waitcnt lgkmcnt(0)")
        k(f"s_mov_b32 {s(sCnt)}, 0")
        stamp(lg, "dsp")
        hx_loads(vm.issue, "hx")
        k("NOHX:")
    S.free(sm1, 2)
    V.free(rows, 2), V.free(vHw), V.free(vGU)
    for x in Wf + [aG[1]]:
        V.free(x, 4)
    od = om = Dn = t3 = vFl = None

    def dn_reads(issue, tag=False):
        x = f"ds_read_b32 {v(vFl)}, {v(t3)} offset:{M_DFL}"
        issue(x, "dfl") if tag else issue(x)
        for ct in range(4):
            for hj in range(2):
                x = f"ds_read_b64_tr_b16 {v(Dn[ct] + 2 * hj, 2)}, {v(t3 + ct if ct else vDn)} offset:{hj * 512}"
                issue(x, f"dn{ct}") if tag else issue(x)

    def res_math():
        for st, xx in ((Sd, vd), (Sm, vmr)):
            k(f"v_mul_f32 {v(st + 1)}, -{v(st)}, {v(st + 1)}")
            k(f"v_add_f32 {v(st)}, 1.0, {v(st)}")
        for st, xx in ((Sd, vd), (Sm, vmr)):
            for j in range(8):
                k(f"v_fma_f32 {v(xx + j)}, {v(xx + j)}, {v(st)}, {v(st + 1)}")
        V.free(Sd, 2), V.free(Sm, 2)

    def sec_image():
        if not early_res and not late_res:
            res_unpack()
        vm.wait("tile")
        k("UCHK:")
        k(f"v_max3_u32 {v(a)}, {v(UA)}, {v(UA + 1)}, {v(UA + 2)}")
        k(f"v_max3_u32 {v(b)}, {v(UB)}, {v(UB + 1)}, {v(UB + 2)}")
        k(f"v_max3_u32 {v(a)}, {v(a)}, {v(UA + 3)}, {v(UB + 3)}")
        if two:
            k(f"v_max3_u32 {v(a)}, {v(a)}, {v(b)}, {v(UE)}")
        else:
            k(f"v_max3_u32 {v(b)}, {v(b)}, {v(UE)}, {v(Sd)}")
            k(f"v_max3_u32 {v(a)}, {v(a)}, {v(Sd + 1)}, {v(Sm)}")
            k(f"v_max3_u32 {v(a)}, {v(a)}, {v(b)}, {v(Sm + 1)}")
        k(f"v_cmp_eq_u32 vcc, -1, {v(a)}")
        k("s_cbranch_vccnz URETRY")
        k("UOK:")
        stamp(lg, "tile")
        if P["hx_at"] == -2:
            if quick:
                assert vm.done == vm.n
                k("s_cmpk_ge_u32 s2, 224")
                k("s_cbranch_scc1 NOHX")
            hx_loads(vm.issue, "hx")
            if quick:
                k("NOHX:")
            res_loads("hx")
        k(f"v_perm_b32 {v(a)}, {v(UA)}, {v(UB)}, {v(vSa)}")
        k(f"v_perm_b32 {v(UB)}, {v(UB)}, {v(UA)}, {v(vSb)}")
        if P["xc"]:
            lg.issue(f"ds_write_b16 {v(vIe)}, {v(UE)} offset:{XC}")
        else:
            lg.issue(f"ds_write_b32 {v(vIe)}, {v(UE)} offset:32")
        k(f"v_mov_b32 {v(UA)}, {v(a)}")
        lg.issue(f"ds_write_b64 {v(vIa)}, {v(UA + 2, 2)} offset:40")
        lg.issue(f"ds_write_b64 {v(vIb)}, {v(UB + 2, 2)} offset:48")
        lg.issue(f"ds_write_b64 {v(vIb)}, {v(UB, 2)} offset:8")
        lg.issue(f"ds_write_b64 {v(vIa)}, {v(UA, 2)}")
        if not late_res:
            res_math()
        if order == "D":
            if not quick or P["hx_at"] < -2:
                k("s_cmpk_ge_u32 s2, 224")
            k("s_cbranch_scc1 NODN")
            sec_down()
            k("DNJ:")
        lg.all()
        k("s_barrier")
        stamp(lg, "bar5")
        res_loads("bar5")
        V.free(UA, 4), V.free(UB, 4), V.free(UE)
        for x in (vUo, vUe, vIa, vIb, vIe, vSa, vSb, vSd, vSm):
            V.free(x)

    def stage2_tail(acc, EX):
        nonlocal od, om, vd, vmr
        assert P["xc"] and late_res
        vd, vmr, od, om, t4 = V(8), V(8), V(4), V(4), V(8)
        for st in (Sd, Sm):
            k(f"v_mul_f32 {v(st + 1)}, -{v(st)}, {v(st + 1)}")
            k(f"v_add_f32 {v(st)}, 1.0, {v(st)}")
        k(f"v_bfrev_b32 {v(a)}, 1")
        k(f"v_cndmask_b32 {v(vOd)}, {v(vOd)}, {v(a)}, {s(sd0, 2)}")
        k(f"v_cndmask_b32 {v(vOm)}, {v(vOm)}, {v(a)}, {s(sm0, 2)}")
        k(f"v_mov_b32 {v(EX)}, {v(acc[0])}")
        for j in range(4):
            k(f"v_add_f32 {v(vd + j)}, {v(Sd + 1)}, {v(acc[0] + j)}")
        k(f"v_permlane16_swap_b32 {v(acc[0])}, {v(EX)}")
        for j in range(3):
            k(f"v_add_f32 {v(vmr + 5 + j)}, {v(Sm + 1)}, {v(acc[0] + 3 - j)}")
        for j in range(4):
            k(f"v_add_f32 {v(vd + 4 + j)}, {v(Sd + 1)}, {v(acc[1] + j)}")
            k(f"v_add_f32 {v(vmr + 1 + j)}, {v(Sm + 1)}, {v(acc[1] + 3 - j)}")
            if j == 2:
                k(f"v_permlane32_swap_b32 {v(acc[0])}, {v(acc[2])}")
        k(f"v_add_f32_dpp {v(vmr)}, {v(EX)}, {v(Sm + 1)} quad_perm:[0,1,2,3] row_mask:0x5 bank_mask:0xf")
        k(f"v_add_f32_dpp {v(vmr)}, {v(acc[2])}, {v(Sm + 1)} quad_perm:[0,1,2,3] row_mask:0xa bank_mask:0xf")
        k(f"s_or_b64 vcc, {s(sd0, 2)}, {s(sm0, 2)}")
        stamp(lg, "s2m")
        for tag, dst, src, st, o, adr in (("resd", vd, xd, Sd, od, vOd), ("res", vmr, xm, Sm, om, vOm)):
            vm.wait(tag)
            for j in range(4):
                k(f"v_lshlrev_b32 {v(t4 + 2 * j)}, 16, {v(src + j)}")
                k(f"v_and_b32 {v(t4 + 2 * j + 1)}, 0xffff0000, {v(src + j)}")
            for j in range(8):
                k(f"v_fmac_f32 {v(dst + j)}, {v(t4 + j)}, {v(st)}")
            if tag == "res":
                k("s_cbranch_scc1 FINW")
                k("FIND:")
            for j in range(4):
                k(f"v_cvt_pk_bf16_f32 {v(o + j)}, {v(dst + 2 * j)}, {v(dst + 2 * j + 1)}")
            if tag == "resd":
                vm.issue(f"buffer_store_dwordx4 {v(o, 4)}, {v(adr)}, {OUT}, 0 offen {P['outflag']}")
        stamp(lg, "s2done")
        V.free(EX, 4), V.free(vXr), V.free(t4, 8), V.free(xd, 4), V.free(xm, 4), V.free(Sd, 2), V.free(Sm, 2)

    def sec_stage2(hx_at, split=-1):
        nonlocal od, om
        acc = [V(4), V(4), V(4)]
        fr = [[V(4), V(4), V(4)], [V(4), V(4), V(4)]]

        def s2reads(ks):
            for m, off in enumerate((0, 40) if P["xc"] else (0, 40, 8)):
                for rd in range(2):
                    lg.issue(f"ds_read_b64_tr_b16 {v(fr[ks % len(fr)][m] + 2 * rd, 2)}, {v(vIr)} offset:{ks * 3072 + rd * 768 + off}", f"s2_{ks}_{m}")

        if P["xc"]:
            EX = V(4)
            s2reads(0)
            lg.issue(f"ds_read_b128 {v(EX, 4)}, {v(vXr)} offset:{XC - 48}", "ex")
            s2reads(1)
            if P["xc"] > 1:
                fr.append([V(4), V(4)])
                s2reads(2)
        else:
            s2reads(0), s2reads(1)
        nb = len(fr)
        for ks in range(9):
            if ks == hx_at:
                hx_loads(vm.issue, "hx")
                res_loads("hx")
            if ks == split:
                stamp(lg, "s2a")
                k("s_cmp_ge_u32 s2, 224")
                k("s_cbranch_scc1 NODN")
                sec_down()
                k("DNJ:")
                if P["bar6"]:
                    k("s_barrier")
                res_loads("pst")
            if ks == 8 or ks == max(P.get("res_ks", 6), split):
                if late_res and vd is None and not P["rl"]:
                    res_unpack()
                    res_math()
            if ks == 8:
                break
            for m in range(3):
                if P["xc"] and m == 2:
                    if ks == 0:
                        lg.wait("ex")
                    mf(acc[2], fr[ks & 1][2] if ks else EX, K2 + 4 * ks, acc[2] if ks else None)
                    if ks < 7:
                        for j in range(4):
                            k(f"v_mov_b32_dpp {v(fr[~ks & 1][2] + j)}, {v(EX + j)} row_shr:{ks + 1} row_mask:0xf bank_mask:0xf")
                    continue
                lg.wait(f"s2_{ks}_{m}")
                mf(acc[m], fr[ks % nb][m], K2 + 4 * ks, acc[m] if ks else None)
                if P["xc"] and m == 1 and ks + nb < 8:
                    s2reads(ks + nb)
            if ks + 2 < 8 and not P["xc"]:
                s2reads(ks + 2)
            V.free(K2 + 4 * ks, 4)
        if P["rl"]:
            stage2_tail(acc, EX)
        else:
            od, om = V(4), V(4)
            k(f"v_bfrev_b32 {v(a)}, 1")
            k(f"v_cndmask_b32 {v(vOd)}, {v(vOd)}, {v(a)}, {s(sd0, 2)}")
            k(f"v_cndmask_b32 {v(vOm)}, {v(vOm)}, {v(a)}, {s(sm0, 2)}")
            if P["xc"]:
                k(f"v_mov_b32 {v(EX)}, {v(acc[0])}")
            for j in range(4):
                k(f"v_add_f32 {v(vd + j)}, {v(vd + j)}, {v(acc[0] + j)}")
            if P["xc"]:
                k(f"v_permlane16_swap_b32 {v(acc[0])}, {v(EX)}")
            for j in range(3):
                k(f"v_add_f32 {v(vmr + 5 + j)}, {v(vmr + 5 + j)}, {v(acc[0] + 3 - j)}")
            for j in range(4):
                k(f"v_add_f32 {v(vd + 4 + j)}, {v(vd + 4 + j)}, {v(acc[1] + j)}")
                k(f"v_add_f32 {v(vmr + 1 + j)}, {v(vmr + 1 + j)}, {v(acc[1] + 3 - j)}")
                if P["xc"] and j == 2:
                    k(f"v_permlane32_swap_b32 {v(acc[0])}, {v(acc[2])}")
            if P["xc"]:
                k(f"v_add_f32_dpp {v(vmr)}, {v(EX)}, {v(vmr)} quad_perm:[0,1,2,3] row_mask:0x5 bank_mask:0xf")
                k(f"v_add_f32_dpp {v(vmr)}, {v(acc[2])}, {v(vmr)} quad_perm:[0,1,2,3] row_mask:0xa bank_mask:0xf")
                V.free(EX, 4), V.free(vXr)
            else:
                k(f"v_add_f32 {v(vmr)}, {v(vmr)}, {v(acc[2])}")
            for dst, src in ((od, vd), (om, vmr)):
                for j in range(4):
                    k(f"v_cvt_pk_bf16_f32 {v(dst + j)}, {v(src + 2 * j)}, {v(src + 2 * j + 1)}")
            k(f"s_or_b64 vcc, {s(sd0, 2)}, {s(sm0, 2)}")
            k("s_cbranch_scc1 FINW")
            k("FIND:")
            stamp(lg, "s2done")
        for x in acc + sum(fr, []):
            V.free(x, 4)

    def sec_down():
        nonlocal Dn, t3, vFl
        Dn = [V(4) for _ in range(4)]
        t3, vFl = V(4), V()
        Dd = [V(4) for _ in range(4)]
        e, gq, Bh = V(4), V(4), V(4)
        sNan = S(2)
        k(f"v_mov_b32 {v(t3)}, 0")
        for ct in range(1, 4):
            k(f"v_xor_b32 {v(t3 + ct)}, {ct * 32}, {v(vDn)}")
        dn_first = order in "ACDE" or P["dmid"] == 32
        if dn_first:
            dn_reads(lg.issue, True)
        k(f"s_mov_b32 {s(sCnt)}, 0")
        stamp(lg, "hxw")
        vm.wait("hx")
        stamp(lg, "hx1")
        k("HCHK:")
        for j in range(4):
            k(f"v_add_f32 {v(H0 + j)}, {v(H0 + j)}, {v(H1 + j)}")
        for j in range(4):
            k(f"v_add_f32_dpp {v(H0 + j)}, {v(H0 + j)}, {v(H0 + j)} row_ror:8 row_mask:0xf bank_mask:0xf")
        k(f"v_cmp_u_f32 vcc, {v(H0)}, {v(H0 + 1)}")
        k(f"v_cmp_u_f32 {s(sNan, 2)}, {v(H0 + 2)}, {v(H0 + 3)}")
        for j in range(4):
            k(f"v_mov_b32_dpp {v(gq + j)}, {v(H0 + j)} quad_perm:[0,1,0,1] row_mask:0xf bank_mask:0xf")
        k(f"s_or_b64 vcc, vcc, {s(sNan, 2)}")
        k("s_cbranch_scc1 HRETRY")
        k("HOK:")
        stamp(lg, "hx")
        if order == "E" and P["hx_at"] != -4:
            tile_loads(vm.issue, "tile", part=1)
        res_loads("hok")
        if not dn_first:
            dn_reads(lg.issue, True)
        for j in range(4):
            k(f"v_mul_f32 {v(e + j)}, {fl(-1.4426950408889634)}, {v(gq + j)}")
        for j in range(4):
            k(f"v_exp_f32 {v(e + j)}, {v(e + j)}")
            k(f"v_mul_f32_dpp {v(gq + j)}, {v(H0 + j)}, {v(gq + j)} quad_perm:[2,3,2,3] row_mask:0xf bank_mask:0xf")
        for j in range(4):
            k(f"v_add_f32 {v(e + j)}, 1.0, {v(e + j)}")
        for j in range(4):
            k(f"v_rcp_f32 {v(e + j)}, {v(e + j)}")
        k(f"s_mov_b32 {s(sCnt)}, 0")
        lg.wait("dfl")
        k("DCHK:")
        k(f"v_cmp_eq_u32 vcc, -1, {v(vFl)}")
        k("s_cbranch_vccnz DRETRY")
        k("DOK:")
        for j in range(4):
            k(f"v_mul_f32 {v(gq + j)}, {v(gq + j)}, {v(e + j)}")
        k(f"v_cvt_pk_bf16_f32 {v(Bh)}, {v(gq)}, {v(gq + 1)}")
        k(f"v_cvt_pk_bf16_f32 {v(Bh + 1)}, {v(gq + 2)}, {v(gq + 3)}")
        k(f"s_add_u32 {s(sHr)}, {s(sPo)}, 7168")
        k(f"v_mov_b32_dpp {v(Bh + 2)}, {v(Bh)} row_shl:4 row_mask:0xf bank_mask:0xf")
        k(f"v_mov_b32_dpp {v(Bh + 3)}, {v(Bh + 1)} row_shl:4 row_mask:0xf bank_mask:0xf")
        for ct in range(4):
            lg.wait(f"dn{ct}")
            mf(Dd[ct], Dn[ct], Bh)
        for pr, Q4, so in ((0, e, sPo), (1, gq, sHr)):
            A_, B_ = Dd[2 * pr], Dd[2 * pr + 1]
            k(f"v_cvt_pk_bf16_f32 {v(Q4)}, {v(A_)}, {v(A_ + 1)}")
            k(f"v_cvt_pk_bf16_f32 {v(Q4 + 1)}, {v(A_ + 2)}, {v(A_ + 3)}")
            k(f"v_cvt_pk_bf16_f32 {v(Q4 + 2)}, {v(B_)}, {v(B_ + 1)}")
            k(f"v_cvt_pk_bf16_f32 {v(Q4 + 3)}, {v(B_ + 2)}, {v(B_ + 3)}")
            k(f"v_permlane16_swap_b32 {v(Q4)}, {v(Q4 + 2)}")
            k(f"v_permlane16_swap_b32 {v(Q4 + 1)}, {v(Q4 + 3)}")
            k(f"s_mov_b64 exec, {s(sN2, 2)}")
            vm.issue(f"buffer_store_dwordx4 {v(Q4, 4)}, {v(vPo)}, {WS}, {s(so)} offen sc1")
            k("s_mov_b64 exec, -1")
        stamp(lg, "pst")
        if order == "D":
            res_loads("pst")
        for x in Dd + Dn + [e, gq, Bh, t3, H0, H1]:
            V.free(x, 4)
        V.free(vFl)
        S.free(sNan, 2)

    if order == "A":
        sec_image()
        V.free(aG[0], 4)
        sec_stage2(P["hx_at"])
        k("s_cmp_ge_u32 s2, 224")
        k("s_cbranch_scc1 COUT")
        sec_down()
    elif order == "D":
        assert P["hx_at"] < 0 and late_res
        sec_image()
        V.free(aG[0], 4)
        sec_stage2(-9)
    elif order == "E":
        assert late_res and P["res_at"] == "hok" and P["tn"] < 5
        k("s_cmpk_ge_u32 s2, 224")
        if P["hx_at"] == -4:
            k("s_barrier")
        k("s_cbranch_scc1 NODN")
        hx_loads(vm.issue, "hx")
        if P["hx_at"] == -4:
            tile_loads(vm.issue, "tile", part=1)
        sec_down()
        k("DNJ:")
        k(f"s_mov_b32 {s(sCnt)}, 0")
        sec_image()
        V.free(aG[0], 4)
        sec_stage2(-9)
    elif order == "C":
        assert P["hx_at"] <= P["split"]
        sec_image()
        V.free(aG[0], 4)
        sec_stage2(P["hx_at"], P["split"])
    else:
        k("s_cmp_ge_u32 s2, 224")
        k("s_cbranch_scc1 NODN")
        hx_loads(vm.issue, "hx")
        assert P["res_at"] != "hx"
        sec_down()
        k("DNJ:")
        k(f"s_mov_b32 {s(sCnt)}, 0")
        hook("pst")
        V.free(aG[0], 4)
        sec_image()
        sec_stage2(-1)
    k("COUT:")
    for src, adr in ((od, vOd), (om, vOm))[1 if P["rl"] else 0:]:
        k(f"buffer_store_dwordx4 {v(src, 4)}, {v(adr)}, {OUT}, 0 offen {P['outflag']}")
    if prof:
        stamp_flush(lg, sW, stamps)
    prof_names = {"compute": list(stamps)}
    k("END:")
    k("s_endpgm")

    if P["fs"]:
        k("FSKIP:")
        k("s_waitcnt lgkmcnt(0)")
        k("s_branch GUE")
    k("URETRY:")
    k(f"s_add_u32 {s(sCnt)}, {s(sCnt)}, 1")
    k(f"s_cmp_ge_u32 {s(sCnt)}, {SPIN}")
    k("s_cbranch_scc1 UOK")
    tile_loads(k)
    k("s_waitcnt vmcnt(0)")
    k("s_branch UCHK")
    k("HRETRY:")
    k(f"s_add_u32 {s(sCnt)}, {s(sCnt)}, 1")
    k(f"s_cmp_ge_u32 {s(sCnt)}, {SPIN}")
    k("s_cbranch_scc1 HOK")
    hx_loads(k)
    k("s_waitcnt vmcnt(0)")
    k("s_branch HCHK")
    k("DRETRY:")
    k(f"s_add_u32 {s(sCnt)}, {s(sCnt)}, 1")
    k(f"s_cmp_ge_u32 {s(sCnt)}, {SPIN * 16}")
    k("s_cbranch_scc1 DOK")
    dn_reads(k)
    k("s_waitcnt lgkmcnt(0)")
    k("s_branch DCHK")
    if P["order"] in "BCDE":
        k("NODN:")
        if order == "E":
            tile_loads(k, part=1, first=True)
        if P["res_at"] == "hok" and not quick:
            k(f"buffer_load_dwordx4 {v(xd, 4)}, {v(vOd)}, {X}, 0 offen")
            k(f"buffer_load_dwordx4 {v(xm, 4)}, {v(vOm)}, {X}, 0 offen")
        k("s_waitcnt vmcnt(0) lgkmcnt(0)")
        k("s_branch DNJ")
    k(";@N")
    for x in late:
        k(x)
    k("FINW:")
    for msk, adr, src, off in ((sd0, vFd, vd, M_FIN), (sm0, vFm, vmr, M_FIN + 256)):
        k(f"s_mov_b64 exec, {s(msk, 2)}")
        k(f"ds_write_b128 {v(adr)}, {v(src, 4)} offset:{off}")
        k(f"ds_write_b128 {v(adr)}, {v(src + 4, 4)} offset:{off + 16}")
    k("s_mov_b64 exec, -1")
    k("s_waitcnt lgkmcnt(0)")
    k("s_branch FIND")
    vtop = V.top
    assert not S.busy[100] and not S.busy[101] and S.top <= 100

    V.busy, S.busy, stamps[:] = list(common[0]), list(common[1]), list(common[2])
    vm, lg = Counter(k, "vmcnt", 63), Counter(k, "lgkmcnt", 15)
    aux0 = []
    idle = P["tA"] == "idle"
    if "C" in P["first"]:
        main_lines, k.lines = k.lines, aux0
    else:
        k(";@C")
        k(f";@R {P['tC']} 7 4")
    k("COMM0:")
    k("s_setprio 3")
    stamp(lg, "cent")
    G = V(4)
    M1 = V(4)
    vZ, a, b, vSo, vGo, vL16, vXo, vRm, vL4 = (V() for _ in range(9))
    sEp, sSt, sGp, sGr, sCnt, sCb, sPart = (S() for _ in range(7))
    sNo, sK, sC, sOk, sOdd = (S(2) for _ in range(5))
    k(f"v_mov_b32 {v(vZ)}, 0")
    k(f"s_mov_b32 {s(sEp)}, {W_EPOCH}")
    for j in range(4):
        k(f"v_mov_b32 {v(M1 + j)}, -1")
    k(f"s_lshr_b32 {s(sCb)}, {s(sSl)}, 2")
    k(f"s_and_b32 {s(sPart)}, {s(sSl)}, 3")
    k(f"v_lshlrev_b32 {v(vL16)}, 4, {v(vL)}")
    k(f"v_lshrrev_b32 {v(a)}, 5, {v(vL)}")
    k(f"v_and_b32 {v(b)}, 0x1f0, {v(vL16)}")
    vC1, vC2, sCh, sCp, sCa, sCu = V(), V(), S(), S(), S(), S()
    k(f"v_lshl_add_u32 {v(vC1)}, {v(a)}, 11, {v(b)}")
    k(f"s_lshl3_add_u32 {s(sCh)}, {s(sCb)}, {s(sPart)}")
    k(f"s_lshl_b32 {s(sCh)}, {s(sCh)}, 9")
    k(f"s_add_u32 {s(sCh)}, {s(sCh)}, {W_HX}")
    k(f"s_mul_i32 {s(sCp)}, {s(sPart)}, {8 * 7168}")
    k(f"s_lshl_b32 {s(sGp)}, {s(sCb)}, 7")
    k(f"s_add_u32 {s(sCp)}, {s(sCp)}, {s(sGp)}")
    k(f"s_add_u32 {s(sCp)}, {s(sCp)}, {W_PART}")
    k("s_cmpk_lt_u32 s2, 224")
    k(f"s_cselect_b32 {s(sCh)}, {s(sCh)}, {OOB}")
    k(f"s_cselect_b32 {s(sCp)}, {s(sCp)}, {OOB}")
    k(f"v_lshrrev_b32 {v(a)}, 3, {v(vL)}")
    k(f"v_and_b32 {v(b)}, 0x70, {v(vL16)}")
    k(f"v_mul_u32_u24 {v(a)}, 7168, {v(a)}")
    k(f"v_add_u32 {v(vC2)}, {v(a)}, {v(b)}")

    def own_stats():
        k(f"v_lshlrev_b32 {v(b)}, 8, {v(vL)}")
        k(f"v_add_u32 {v(a)}, {s(sQ)}, {v(b)}")
        k(f"v_sub_u32 {v(b)}, {s(sRP)}, {v(b)}")
        k(f"s_cmp_eq_u32 {s(sHF)}, 0")
        k("s_cselect_b64 vcc, 0, -1")
        k(f"v_cndmask_b32 {v(vSo)}, {v(a)}, {v(b)}, vcc")
        stat_addr(vSo, vSo, a, b)
        k(f"s_mov_b32 {s(sSt)}, {W_STATS}")

    if not two:
        own_stats()
    if spin:
        Z4 = V(4)
        for j in range(4):
            k(f"v_mov_b32 {v(Z4 + j)}, 0")
        k(f"ds_write_b128 {v(vZ)}, {v(Z4, 4)} offset:{M_CNT}")
        V.free(Z4, 4)
    k("s_waitcnt lgkmcnt(0)")
    stamp(lg, "ckarg")
    vm.issue(f"buffer_load_dwordx2 {v(G + 2, 2)}, {v(vZ)}, {WS}, {s(sEp)} offen sc1", "ep")
    bari("BI1")
    k(f"s_mul_i32 {s(sCa)}, {s(sQ)}, {UQS}")
    k(f"s_lshl_b32 {s(sCu)}, {s(sHF)}, 13")
    k(f"s_add_u32 {s(sCa)}, {s(sCa)}, {s(sCu)}")
    k(f"s_add_u32 {s(sCu)}, {s(sCa)}, 4096")
    if P["clr"] == "post" and bar0:
        k("s_barrier")

    def clears(which):
        if "u" in which:
            for i in range(8):
                vm.issue(f"buffer_store_dwordx4 {v(M1, 4)}, {v(vL16)}, {WS}, {s(sCu if i >= 4 else sCa)} offen offset:{(i & 3) * 1024} sc1")
        if "e" in which:
            vm.issue(f"buffer_store_dwordx4 {v(M1, 4)}, {v(vC1)}, {WS}, {s(sCh)} offen sc1")
            vm.issue(f"buffer_store_dwordx4 {v(M1, 4)}, {v(vC2)}, {WS}, {s(sCp)} offen sc1")
            k(f"s_add_u32 {s(sCp)}, {s(sCp)}, {32 * 7168}")
            vm.issue(f"buffer_store_dwordx4 {v(M1, 4)}, {v(vC2)}, {WS}, {s(sCp)} offen sc1")
            if not two:
                k("s_mov_b64 exec, 0xff")
                vm.issue(f"buffer_store_dwordx2 {v(M1, 2)}, {v(vSo)}, {WS}, {s(sSt)} offen sc1")
                k("s_mov_b64 exec, -1")

    clate = P["clate"]
    clears([c for c in "ue" if c not in clate])
    stamp(lg, "cclr")
    if "C" in P["first"]:
        k("s_branch COMM")
        k.lines = main_lines
        if not idle:
            k(";@C")
        k(f";@R {P['tC']} 3 4")
        k("COMM:")
    if P["clr"] == "pre" and bar0:
        k("s_barrier")
    if two:
        own_stats()
    k(f"v_lshlrev_b32 {v(a)}, 3, {v(vL)}")
    lg.issue(f"ds_write_b64 {v(a)}, {v(M1, 2)} offset:{M_FIN}")
    k("s_mov_b32 s26, s6")
    k("s_mov_b32 s27, s7")
    k(f"v_lshlrev_b32 {v(vGo)}, 12, {v(vL)}")
    k("s_and_b32 s3, s2, 3")
    k(f"s_lshl_b32 {s(sGp)}, s3, 10")
    k("s_and_b32 s3, s2, 0xfc")
    k(f"s_lshl2_add_u32 {s(sGp)}, s3, {s(sGp)}")
    k(f"s_add_u32 {s(sGp)}, {s(sGp)}, {W_GRAN}")
    NR = int(P["rep"][1:])
    if P["rep"] == "x8":
        k(f"s_lshl_b32 {s(sGr)}, {s(sX8)}, 12")
    else:
        k(f"s_and_b32 {s(sGr)}, {s(sU)}, {NR - 1}")
        k(f"s_lshl_b32 {s(sGr)}, {s(sGr)}, 12")
    k(f"s_add_u32 {s(sGr)}, {s(sGr)}, {W_GRAN}")
    k(f"s_mov_b32 {s(sCnt)}, 0")
    k(f"s_lshl_b32 {s(sT)}, {s(sHF)}, 5")
    k(f"v_lshlrev_b32 {v(vL4)}, 2, {v(vL)}")
    k(f"v_add_u32 {v(vRm)}, {s(sT)}, {v(vL4)}")
    k(f"v_lshrrev_b32 {v(a)}, 4, {v(vL)}")
    k(f"v_bfe_u32 {v(b)}, {v(vL)}, 1, 3")
    k(f"v_lshl_add_u32 {v(a)}, {v(b)}, 2, {v(a)}")
    k(f"s_lshl_b32 {s(sT)}, {s(sPart)}, 9")
    k(f"v_lshl_add_u32 {v(vXo)}, {v(a)}, 4, {s(sT)}")
    k(f"s_mov_b32 {s(sOdd)}, 0xaaaaaaaa")
    k(f"s_mov_b32 {s(sOdd + 1)}, 0xaaaaaaaa")
    if spin:
        k("s_cmpk_lt_u32 s2, 224")
        k("s_cbranch_scc1 CB0")
        k("s_barrier")
        k("CB0:")
    elif bar0b:
        k("s_barrier")
    vm.wait("ep")
    clears(clate)
    V.free(vC1), V.free(vC2)
    for x in (sCh, sCp, sCa, sCu):
        S.free(x)
    k(f"v_add_u32 {v(G + 2)}, 2, {v(G + 2)}")
    k(f"v_or_b32 {v(G + 2)}, 1, {v(G + 2)}")
    St = V(3)
    if two:
        k(f"v_add_u32 {v(G + 3)}, {v(G + 2)}, {v(G + 3)}")
        k(f"v_mov_b32 {v(St + 2)}, {v(G + 2)}")
    k(f"v_readfirstlane_b32 {s(sNo + 1)}, {v(G + 3)}")
    k(f"v_readfirstlane_b32 {s(sNo)}, {v(G + 2)}")
    stamp(lg, "nonce")
    lg.all()
    Kq = V(8)
    if spin:
        k("CSPIN:")
        lg.issue(f"ds_read_b32 {v(b)}, {v(vZ)} offset:{M_CNT + 4}", "ct")
    else:
        k("s_barrier")
    lg.issue(f"ds_read_b128 {v(Kq, 4)}, {v(vZ)} offset:{M_KEY}", "k0")
    lg.issue(f"ds_read_b128 {v(Kq + 4, 4)}, {v(vZ)} offset:{M_KEY + 16}", "k1")
    lg.issue(f"ds_read_b32 {v(St)}, {v(vRm)} offset:{M_RS}")
    lg.issue(f"ds_read_b32 {v(St + 1)}, {v(vL4)} offset:{M_MEAN}", "st")
    h1, m1, h2, m2 = (V() for _ in range(4))
    if spin:
        lg.wait("ct")
        k(f"v_and_b32 {v(b)}, 0xff, {v(b)}")
        k(f"v_cmp_eq_u32 vcc, 8, {v(b)}")
        k("s_cbranch_vccz CSPIN")
    lg.wait("k0")
    k(f"v_max3_u32 {v(h1)}, {v(Kq)}, {v(Kq + 1)}, {v(Kq + 2)}")
    k(f"v_med3_u32 {v(m1)}, {v(Kq)}, {v(Kq + 1)}, {v(Kq + 2)}")
    lg.wait("k1")
    k(f"v_max3_u32 {v(h2)}, {v(Kq + 3)}, {v(Kq + 4)}, {v(Kq + 5)}")
    k(f"v_med3_u32 {v(m2)}, {v(Kq + 3)}, {v(Kq + 4)}, {v(Kq + 5)}")
    k(f"v_med3_u32 {v(b)}, {v(h1)}, {v(h2)}, {v(Kq + 6)}")
    k(f"v_max3_u32 {v(h1)}, {v(h1)}, {v(h2)}, {v(Kq + 6)}")
    k(f"v_max3_u32 {v(b)}, {v(b)}, {v(m1)}, {v(m2)}")
    k(f"v_max_u32 {v(G)}, {v(h1)}, {v(Kq + 7)}")
    k(f"v_med3_u32 {v(G + 1)}, {v(h1)}, {v(b)}, {v(Kq + 7)}")
    RM = f"s_mov_b64 exec, {hex((1 << NR) - 1)}" if NR < 32 else "s_mov_b32 exec_hi, 0"
    k(RM)
    stamp(lg, "top2")
    if two:
        vm.issue(f"buffer_store_dwordx3 {v(G, 3)}, {v(vGo)}, {WS}, {s(sGp)} offen sc1")
        if NR != 8:
            k("s_mov_b64 exec, 0xff")
        lg.wait("st")
        vm.issue(f"buffer_store_dwordx3 {v(St, 3)}, {v(vSo)}, {WS}, {s(sSt)} offen sc1")
    else:
        vm.all()
        vm.issue(f"buffer_store_dwordx4 {v(G, 4)}, {v(vGo)}, {WS}, {s(sGp)} offen sc1")
        if NR != 8:
            k("s_mov_b64 exec, 0xff")
        lg.wait("st")
        vm.issue(f"buffer_store_dwordx2 {v(St, 2)}, {v(vSo)}, {WS}, {s(sSt)} offen sc1")
    k("s_mov_b64 exec, -1")
    stamp(lg, "pub")
    if P.get("stretch") and P["stretch"][0] == "skew":
        sD, tA_, tB_ = S(4, 4), V(), V()
        k(f"s_load_dwordx2 {s(sD, 2)}, s[0:1], {KA['dbg']}")
        k(f"s_mov_b32 {s(sD + 2)}, 64")
        k(f"s_mov_b32 {s(sD + 3)}, s7")
        k("s_waitcnt lgkmcnt(0)")
        k(f"v_mov_b32 {v(tA_)}, {s(sStamp)}")
        k(f"v_not_b32 {v(tB_)}, {v(tA_)}")
        k("s_mov_b64 exec, 1")
        vm.issue(f"buffer_atomic_umax {v(tA_)}, {v(vZ)}, {s(sD, 4)}, 0 offen sc1")
        vm.issue(f"buffer_atomic_umax {v(tB_)}, {v(vZ)}, {s(sD, 4)}, 0 offen offset:4 sc1")
        k("s_mov_b64 exec, -1")
        S.free(sD, 4), V.free(tA_), V.free(tB_)
    k(f"v_readfirstlane_b32 {s(sK)}, {v(G)}")
    k(f"v_readfirstlane_b32 {s(sK + 1)}, {v(G + 1)}")
    V.free(Kq, 8)
    Q, xs, xf = V(16), V(4), V(8)
    c0, c1, c2_, cM = S(2), S(2), S(2), S(2)

    def mark():
        k(RM)
        k(f"buffer_store_dword {v(G + 3)}, {v(vGo)}, {WS}, {s(sGp)} offen offset:12 sc1")
        k("s_mov_b64 exec, -1")
        stamp(lg, "mark")

    def gran_loads():
        for j in range(4):
            k(f"buffer_load_dwordx4 {v(Q + 4 * j, 4)}, {v(vL16)}, {WS}, {s(sGr)} offen offset:{1024 * j} sc1")

    if P["epoll"] == "pub":
        gran_loads()
    if bar1a:
        k("s_barrier")
    if not spin:
        k("s_barrier")
    if P["epoll"] == "bar1b":
        gran_loads()
    if not spin:
        k("s_barrier")
    stamp(lg, "cb2")
    if prof and "pack" in enabled:
        k("s_waitcnt vmcnt(0)")
        stamp(lg, "pack")
    if two and P["mark_at"] == "bar2":
        assert P["epoll"] in (None, "bar2")
        k("s_waitcnt vmcnt(0)")
        mark()
    if P.get("pollwait"):
        k("s_barrier")
    if P["epoll"]:
        if P["epoll"] == "bar2":
            gran_loads()
        k(f"s_mov_b64 {s(sOk, 2)}, 0")
        k(f"s_mov_b64 {s(sC, 2)}, -1")
        if not P["fin"]:
            k("s_branch REDUCE")
    fin = P["fin"]
    assert not fin or (P["epoll"] and not two)

    def fetch(final):
        k(f"v_mov_b32 {v(a)}, {s(sK)}")
        k(f"v_mov_b32 {v(b)}, {s(sK + 1)}")
        if not final:
            k(f"s_mov_b64 {s(sC, 2)}, {s(sK, 2)}")
        k(f"v_cndmask_b32 {v(a)}, {v(a)}, {v(b)}, {s(sOdd, 2)}")
        k(f"v_and_b32 {v(h2)}, 0x7ff, {v(a)}")
        k(f"v_lshl_add_u32 {v(m2)}, {v(h2)}, 11, {v(vXo)}")
        k(f"buffer_load_dwordx4 {v(xs, 4)}, {v(m2)}, {X}, 0 offen")
        stat_addr(a, a, b, a)
        k(f"buffer_load_dwordx{3 if two else 2} {v(St, 3 if two else 2)}, {v(a)}, {WS}, {s(sSt)} offen sc1")
        if final:
            k("s_barrier")
        else:
            gran_loads()
        k("s_mov_b64 exec, 3")
        k(f"ds_write_b32 {v(vL4)}, {v(h2)} offset:{M_SEL}")
        k("s_mov_b64 exec, -1")
        k(f"s_waitcnt vmcnt({1 if final else 5})")
        for j in range(4):
            k(f"v_lshlrev_b32 {v(xf + 2 * j)}, 16, {v(xs + j)}")
            k(f"v_and_b32 {v(xf + 2 * j + 1)}, 0xffff0000, {v(xs + j)}")
        if final:
            k("SCHK:")
        k(f"s_waitcnt vmcnt({0 if final else 4})")
        if two:
            k(f"v_cmp_eq_u32 {s(sOk, 2)}, {s(sNo)}, {v(St + 2)}")
            k(f"v_mul_f32 {v(St + 1)}, -{v(St)}, {v(St + 1)}")
        elif final:
            k(f"v_max_u32 {v(b)}, {v(St)}, {v(St + 1)}")
            k(f"v_mul_f32 {v(St + 1)}, -{v(St)}, {v(St + 1)}")
            k(f"v_cmp_eq_u32 vcc, -1, {v(b)}")
            k("s_cbranch_vccnz SRETRY")
            k("SOK:")
        else:
            k(f"v_max_u32 {v(a)}, {v(St)}, {v(St + 1)}")
            k(f"v_mul_f32 {v(St + 1)}, -{v(St)}, {v(St + 1)}")
            k(f"v_cmp_ne_u32 {s(sOk, 2)}, -1, {v(a)}")
        for j in range(8):
            k(f"v_fma_f32 {v(xf + j)}, {v(xf + j)}, {v(St)}, {v(St + 1)}")
        for j in range(4):
            k(f"v_cvt_pk_bf16_f32 {v(xs + j)}, {v(xf + 2 * j)}, {v(xf + 2 * j + 1)}")
        k(f"ds_write_b128 {v(vL16)}, {v(xs, 4)} offset:{M_XN}")

    if not fin:
        k("POLLA:")
        stamp(lg, "pa")
        fetch(False)
    k("REDUCE:")
    stamp(lg, "rs")
    k(f"s_add_u32 {s(sCnt)}, {s(sCnt)}, 1")
    def tag(dst, j):
        if two:
            k(f"v_cmp_eq_u32 {dst}, {s(sNo)}, {v(Q + 4 * j + 2)}")
        else:
            k(f"v_cmp_eq_u64 {dst}, {s(sNo, 2)}, {v(Q + 4 * j + 2, 2)}")

    k("s_waitcnt vmcnt(3)")
    tag("vcc", 0)
    k("s_waitcnt vmcnt(2)")
    tag(s(c0, 2), 1)
    k(f"v_max_u32 {v(m1)}, {v(Q + 1)}, {v(Q + 5)}")
    k(f"v_max_u32 {v(h1)}, {v(Q)}, {v(Q + 4)}")
    k(f"v_med3_u32 {v(m1)}, {v(Q)}, {v(Q + 4)}, {v(m1)}")
    if two:
        k(f"v_xor_b32 {v(a)}, {s(sNo + 1)}, {v(Q + 3)}")
        k(f"v_xor_b32 {v(b)}, {s(sNo + 1)}, {v(Q + 7)}")
    k("s_waitcnt vmcnt(1)")
    tag(s(c1, 2), 2)
    k(f"s_and_b64 vcc, vcc, {s(c0, 2)}")
    if two:
        k(f"v_xor_b32 {v(m2)}, {s(sNo + 1)}, {v(Q + 11)}")
        k(f"v_or3_b32 {v(a)}, {v(a)}, {v(b)}, {v(m2)}")
    k("s_waitcnt vmcnt(0)")
    stamp(lg, "ra")
    if two and P["mark_at"] == "red1":
        k(f"s_cmp_eq_u32 {s(sCnt)}, 1")
        k("s_cbranch_scc0 NOMARK")
        mark()
        k("NOMARK:")
    tag(s(c2_, 2), 3)
    k(f"v_max_u32 {v(m2)}, {v(Q + 9)}, {v(Q + 13)}")
    k(f"v_max_u32 {v(h2)}, {v(Q + 8)}, {v(Q + 12)}")
    k(f"v_med3_u32 {v(m2)}, {v(Q + 8)}, {v(Q + 12)}, {v(m2)}")
    k(f"s_and_b64 vcc, vcc, {s(c1, 2)}")
    k(f"v_max_u32 {v(m1)}, {v(m1)}, {v(m2)}")
    k(f"s_and_b64 vcc, vcc, {s(c2_, 2)}")
    k(f"v_med3_u32 {v(m1)}, {v(h1)}, {v(h2)}, {v(m1)}")
    k(f"v_max_u32 {v(h1)}, {v(h1)}, {v(h2)}")
    if two:
        k(f"v_xor_b32 {v(b)}, {s(sNo + 1)}, {v(Q + 15)}")
        k(f"v_or_b32 {v(a)}, {v(a)}, {v(b)}")
        k(f"v_cmp_eq_u32 {s(cM, 2)}, 0, {v(a)}")
    k(f"v_cndmask_b32 {v(m1)}, 0, {v(m1)}, vcc")
    k(f"v_cndmask_b32 {v(h1)}, 0, {v(h1)}, vcc")
    for ctl in ("row_ror:8 row_mask:0xf", "row_ror:4 row_mask:0xf", "row_ror:2 row_mask:0xf", "row_ror:1 row_mask:0xf",
                "row_bcast:15 row_mask:0xa", "row_bcast:31 row_mask:0xc"):
        k(f"v_max_u32_dpp {v(m2)}, {v(m1)}, {v(m1)} {ctl} bank_mask:0xf")
        k(f"v_mov_b32_dpp {v(h2)}, {v(h1)} {ctl} bank_mask:0xf")
        k(f"v_med3_u32 {v(m1)}, {v(h1)}, {v(h2)}, {v(m2)}")
        k(f"v_max_u32 {v(h1)}, {v(h1)}, {v(h2)}")
    tail = []
    if fin:
        k(f"v_readlane_b32 {s(sK)}, {v(h1)}, 63")
        k(f"v_readlane_b32 {s(sK + 1)}, {v(m1)}, 63")
        k("s_cmp_eq_u64 vcc, -1")
        k("s_cbranch_scc0 NOTALL")
        if P["spec"]:
            k(f"s_cmp_eq_u64 {s(sK, 2)}, {s(sC, 2)}")
            k("s_cbranch_scc1 SAME")
        k("FINAL:")
        stamp(lg, "cfin")
        fetch(True)
        main_lines, k.lines = k.lines, tail
        k("NOTALL:")
        if P["dad"]:
            k(f"ds_write_b32 {v(vZ)}, {v(vZ)} offset:{M_GOT}")
            k("s_waitcnt lgkmcnt(0)")
        k(f"s_cmp_ge_u32 {s(sCnt)}, {SPIN}")
        k("s_cbranch_scc1 FINAL")
        if P["spec"]:
            k(f"s_cmp_eq_u64 {s(sK, 2)}, {s(sC, 2)}")
            k(f"s_cselect_b64 vcc, {s(sOk, 2)}, 0")
            k("s_cmp_eq_u64 vcc, -1")
            k("s_cbranch_scc0 POLLA")
        gran_loads()
        k("s_branch REDUCE")
        if P["spec"]:
            k("POLLA:")
            fetch(False)
            k("s_branch REDUCE")
            k("SAME:")
            k(f"s_cmp_eq_u64 {s(sOk, 2)}, -1")
            k("s_cbranch_scc0 FINAL")
            k("s_barrier")
            k("s_branch GOT")
        k("SRETRY:")
        k(f"s_add_u32 {s(sCnt)}, {s(sCnt)}, 1")
        k(f"s_cmp_ge_u32 {s(sCnt)}, {2 * SPIN}")
        k("s_cbranch_scc1 SOK")
        k(f"buffer_load_dwordx2 {v(St, 2)}, {v(a)}, {WS}, {s(sSt)} offen sc1")
        k("s_branch SCHK")
        k.lines = main_lines
    else:
        k(f"s_and_b64 vcc, vcc, {s(sOk, 2)}")
        if two:
            k(f"s_and_b64 vcc, vcc, {s(cM, 2)}")
        k(f"v_readlane_b32 {s(sK)}, {v(h1)}, 63")
        k(f"v_readlane_b32 {s(sK + 1)}, {v(m1)}, 63")
        k(f"s_cmp_eq_u64 {s(sK, 2)}, {s(sC, 2)}")
        k("s_cbranch_scc0 AGAIN")
        k("s_cmp_eq_u64 vcc, -1")
        k("s_cbranch_scc1 GOT")
        k(f"s_cmp_eq_u64 {s(sOk, 2)}, -1")
        k("s_cbranch_scc0 AGAIN")
        k(f"s_cmp_ge_u32 {s(sCnt)}, {SPIN}")
        k("s_cbranch_scc1 GOT")
        gran_loads()
        k("s_branch REDUCE")
        k("AGAIN:")
        k(f"s_cmp_lt_u32 {s(sCnt)}, {SPIN}")
        k("s_cbranch_scc1 POLLA")
    k(";@R B")
    k("GOT:")
    vm.done = vm.n
    k("s_waitcnt lgkmcnt(0)")
    stamp(lg, "got")
    if prof and "cnt" in enabled:
        k(f"s_mul_i32 s3, {s(sCnt)}, 100")
        k(f"s_add_u32 {s(sStamp + 2 * len(stamps))}, {s(sStamp)}, s3")
        stamps.append("cnt")
    k("s_barrier")
    stamp(lg, "sel")
    zero_rest(3)
    V.free(Q, 16), V.free(xs, 4), V.free(xf, 8)
    for x in (c0, c1, c2_, cM):
        S.free(x, 2)
    k("s_cmp_lg_u32 s2, 0")
    k("s_cbranch_scc1 NOEP")
    k("s_mov_b64 exec, 1")
    k(f"buffer_store_dword {v(G + 2)}, {v(vZ)}, {WS}, {s(sEp)} offen sc1")
    k("s_mov_b64 exec, -1")
    k("NOEP:")
    sOwnM, sBlk, sWant, sRole, sKey, sRow, sPb = (S() for _ in range(7))
    k(f"s_and_b32 {s(sBlk)}, {s(sU)}, 15")
    k(f"s_lshr_b32 {s(sWant)}, {s(sU)}, 4")
    k(f"s_lshl_b32 {s(sWant)}, {s(sWant)}, 10")
    k(f"s_or_b32 {s(sWant)}, {s(sWant)}, {s(sX8)}")
    k(f"s_mov_b32 {s(sOwnM)}, 0")
    for role in range(4):
        if role < 2:
            k(f"s_and_b32 {s(sT)}, {s(sK + role)}, 0x407")
        else:
            k(f"s_sub_u32 {s(sT)}, 0, {s(sK + role - 2)}")
            k(f"s_and_b32 {s(sT)}, {s(sT)}, 0x407")
        k(f"s_cmp_eq_u32 {s(sT)}, {s(sWant)}")
        k(f"s_cselect_b32 {s(sT)}, {1 << role}, 0")
        k(f"s_or_b32 {s(sOwnM)}, {s(sOwnM)}, {s(sT)}")
    k("s_cbranch_scc0 MEND")
    As = V(4)
    Pd = V(28)
    vN, vFo, vOo, sg = V(), V(), V(), V()
    ac, bs = V(4), V(4)
    k(f"v_and_b32 {v(vN)}, 15, {v(vL)}")
    k(f"v_and_b32 {v(a)}, 1, {v(vL)}")
    k(f"v_lshlrev_b32 {v(a)}, 4, {v(a)}")
    k(f"v_mov_b32 {v(b)}, 0x3f80")
    k(f"v_lshlrev_b32 {v(a)}, {v(a)}, {v(b)}")
    k(f"v_lshrrev_b32 {v(b)}, 1, {v(vN)}")
    for j in range(4):
        k(f"v_cmp_eq_u32 vcc, {j}, {v(b)}")
        k(f"v_cndmask_b32 {v(As + j)}, 0, {v(a)}, vcc")
    k(f"v_and_b32 {v(a)}, 3, {v(vL)}")
    k(f"v_bfe_u32 {v(b)}, {v(vL)}, 4, 1")
    k(f"v_lshl_add_u32 {v(a)}, {v(a)}, 1, {v(b)}")
    k(f"v_lshlrev_b32 {v(vFo)}, 4, {v(a)}")
    k(f"v_lshlrev_b32 {v(vOo)}, 3, {v(a)}")
    if P["barg"]:
        k("s_barrier")
    if P["hx_at"] == -4:
        k("s_barrier")
    k("s_barrier")
    if P["bar6"]:
        k("s_barrier")
    stamp(lg, "fin")
    k("ROLE:")
    k(f"s_ff1_i32_b32 {s(sRole)}, {s(sOwnM)}")
    k(f"s_bitset0_b32 {s(sOwnM)}, {s(sRole)}")
    k(f"s_bitcmp1_b32 {s(sRole)}, 0")
    k(f"s_cselect_b32 {s(sKey)}, {s(sK + 1)}, {s(sK)}")
    k(f"s_cselect_b32 {s(sPb)}, 32, 0")
    k(f"s_sub_u32 {s(sCb)}, 31, {s(sBlk)}")
    k(f"s_bitcmp1_b32 {s(sRole)}, 1")
    k(f"s_cselect_b32 {s(sCb)}, {s(sCb)}, {s(sBlk)}")
    k(f"s_add_u32 {s(sPb)}, {s(sPb)}, {s(sCb)}")
    k(f"s_mul_i32 {s(sPb)}, {s(sPb)}, 7168")
    k(f"s_add_u32 {s(sPb)}, {s(sPb)}, {W_PART}")
    k(f"s_add_u32 {s(sPart)}, {s(sPb)}, 4096")
    k(f"s_and_b32 {s(sRow)}, {s(sKey)}, 0x7ff")
    k(f"s_lshl_b32 {s(sRow)}, {s(sRow)}, 11")
    k(f"s_lshl_b32 {s(sCb)}, {s(sCb)}, 6")
    k(f"s_add_u32 {s(sRow)}, {s(sRow)}, {s(sCb)}")
    k(f"s_lshl_b32 {s(sT)}, {s(sRole)}, 7")
    k(f"v_add_u32 {v(a)}, {s(sT)}, {v(vFo)}")
    k(f"s_mov_b32 {s(sCnt)}, 0")
    k(f"v_mov_b32 {v(sg)}, {s(sKey)}")
    k(f"v_ashrrev_i32 {v(b)}, 31, {v(sg)}")
    k(f"v_not_b32 {v(b)}, {v(b)}")
    k(f"v_or_b32 {v(b)}, 0x80000000, {v(b)}")
    k(f"v_xor_b32 {v(sg)}, {v(sg)}, {v(b)}")
    k(f"v_mul_f32 {v(sg)}, {fl(-1.4426950408889634)}, {v(sg)}")
    k(f"v_exp_f32 {v(sg)}, {v(sg)}")
    k(f"v_add_f32 {v(sg)}, 1.0, {v(sg)}")
    k(f"v_rcp_f32 {v(sg)}, {v(sg)}")
    if P["rsel"] == 2:
        Pe = V(28)

        def rq(R):
            for j in range(7):
                k(f"buffer_load_dwordx4 {v(R + 4 * j, 4)}, {v(vL16)}, {WS}, {s(sPb if j < 4 else sPart)} offen offset:{(j & 3) * 1024} sc1")

        def rsum(R, behind):
            for j in range(7):
                k(f"s_waitcnt vmcnt({6 - j + behind})")
                mf(ac, As, R + 4 * j, ac if j else None)
            k(f"v_cmp_u_f32 vcc, {v(ac)}, {v(ac)}")

        rq(Pd)
        rsum(Pd, 0)
        k(f"ds_read_b128 {v(bs, 4)}, {v(a)} offset:{M_FIN}")
        k("s_cbranch_vccz RGOT")
        rq(Pd)
        k("RFIN:")
        k("s_waitcnt lgkmcnt(0)")
        k(f"v_max3_u32 {v(b)}, {v(bs)}, {v(bs + 1)}, {v(bs + 2)}")
        k(f"v_max_u32 {v(b)}, {v(b)}, {v(bs + 3)}")
        k(f"v_cmp_eq_u32 vcc, -1, {v(b)}")
        k("s_cbranch_vccz RPOLL")
        k(f"ds_read_b128 {v(bs, 4)}, {v(a)} offset:{M_FIN}")
        k(f"s_add_u32 {s(sCnt)}, {s(sCnt)}, 1")
        k(f"s_cmp_lt_u32 {s(sCnt)}, {SPIN * 16}")
        k("s_cbranch_scc1 RFIN")
        k("RPOLL:")
        rq(Pe)
        rsum(Pd, 7)
        k("s_cbranch_vccz RGOT")
        rq(Pd)
        rsum(Pe, 7)
        k(f"s_add_u32 {s(sCnt)}, {s(sCnt)}, 16")
        k(f"s_cmp_ge_u32 {s(sCnt)}, {SPIN * 16}")
        k("s_cbranch_scc1 RGOT")
        k("s_cbranch_vccnz RPOLL")
    else:
        k("RPOLL:")
        for j in range(7):
            k(f"buffer_load_dwordx4 {v(Pd + 4 * j, 4)}, {v(vL16)}, {WS}, {s(sPb if j < 4 else sPart)} offen offset:{(j & 3) * 1024} sc1")
        k(f"s_add_u32 {s(sCnt)}, {s(sCnt)}, 1")
        for j in range(7):
            k(f"s_waitcnt vmcnt({6 - j})")
            mf(ac, As, Pd + 4 * j, ac if j else None)
        k(f"ds_read_b128 {v(bs, 4)}, {v(a)} offset:{M_FIN}")
        k(f"s_cmp_ge_u32 {s(sCnt)}, {SPIN}")
        k("s_cbranch_scc1 RGOT")
        k(f"v_cmp_u_f32 vcc, {v(ac)}, {v(ac)}")
        k("s_cbranch_vccnz RPOLL")
    k("RGOT:")
    stamp(lg, "rgot")
    for sh in (4, 8):
        for j in range(4):
            k(f"v_add_f32_dpp {v(ac + j)}, {v(ac + j)}, {v(ac + j)} row_ror:{sh} row_mask:0xf bank_mask:0xf")
    k("FCHK:")
    k("s_waitcnt lgkmcnt(0)")
    k(f"v_max3_u32 {v(b)}, {v(bs)}, {v(bs + 1)}, {v(bs + 2)}")
    k(f"v_max_u32 {v(b)}, {v(b)}, {v(bs + 3)}")
    k(f"v_cmp_eq_u32 vcc, -1, {v(b)}")
    k("s_cbranch_vccnz FRETRY")
    k("FOK:")
    for j in range(4):
        k(f"v_fmac_f32 {v(bs + j)}, {v(ac + j)}, {v(sg)}")
    k(f"v_cvt_pk_bf16_f32 {v(bs)}, {v(bs)}, {v(bs + 1)}")
    k(f"v_cvt_pk_bf16_f32 {v(bs + 1)}, {v(bs + 2)}, {v(bs + 3)}")
    k("s_mov_b64 exec, 0x000f000f")
    k(f"buffer_store_dwordx2 {v(bs, 2)}, {v(vOo)}, {OUT}, {s(sRow)} offen {P['outflag']}")
    k("s_mov_b64 exec, -1")
    k(f"s_cmp_lg_u32 {s(sOwnM)}, 0")
    k(f"s_cbranch_scc1 {'ROLW' if P['rsel'] else 'ROLE'}")
    stamp(lg, "done")
    if P.get("stretch"):
        nm, K = P["stretch"]
        k("s_waitcnt lgkmcnt(0)")
        if nm in ("skew", "age"):
            k(f"s_load_dwordx2 s[4:5], s[0:1], {KA['dbg']}")
            k("s_mov_b32 s6, 64")
            k("s_waitcnt lgkmcnt(0)")
            k(f"v_mov_b32 {v(bs)}, 0")
            k(f"buffer_load_dwordx2 {v(bs + 2, 2)}, {v(bs)}, s[4:7], 0 offen sc1")
            k("s_waitcnt vmcnt(0)")
            k(f"v_readfirstlane_b32 s3, {v(bs + 2)}")
            k(f"v_readfirstlane_b32 s4, {v(bs + 3)}")
            k("s_nop 4")
            k("s_not_b32 s4, s4")
            k("s_sub_u32 s3, s3, s4")
        else:
            i = stamps.index(nm)
            k(f"s_sub_u32 s3, {s(sStamp + 2 * i)}, {s(sStamp)}")
        k(f"s_mul_i32 s3, s3, {K}")
        k("s_min_u32 s3, s3, 20000")
        k(f"s_add_u32 s3, s3, {s(sStamp + 2 * (len(stamps) - 1))}")
        k("STR:")
        k("s_memrealtime s[4:5]")
        k("s_waitcnt lgkmcnt(0)")
        k("s_sub_u32 s4, s4, s3")
        k("s_cmp_lt_i32 s4, 0")
        k("s_cbranch_scc1 STR")
    k("MEND:")
    if prof:
        stamp_flush(lg, sW, stamps)
    prof_names["comm"] = list(stamps)
    k("s_endpgm")
    if P["rsel"]:
        k("ROLW:")
        k("s_waitcnt vmcnt(0)")
        k("s_branch ROLE")
    k("FRETRY:")
    k(f"s_add_u32 {s(sCnt)}, {s(sCnt)}, 1")
    k(f"s_cmp_ge_u32 {s(sCnt)}, {SPIN * 16}")
    k("s_cbranch_scc1 FOK")
    k(f"ds_read_b128 {v(bs, 4)}, {v(a)} offset:{M_FIN}")
    k("s_branch FCHK")
    if tail:
        k(";@N")
    k.lines += tail

    vtop = max(vtop, V.top)

    V.busy, S.busy, stamps[:] = list(common[0]), list(common[1]), list(common[2])
    vm, lg = Counter(k, "vmcnt", 63), Counter(k, "lgkmcnt", 15)
    if "L" in P["first"]:
        main_lines, k.lines = k.lines, aux0
    else:
        k(";@C")
        k(f";@R {P['tL']} 5.5 8")
    k("LOAD:")
    if not idle:
        k("s_cmpk_ge_u32 s2, 224")
        k("s_cbranch_scc1 END")
    if not idle:
        bari("BI2")
    stamp(lg, "lent")
    k("s_lshl_b32 s14, 7, 20")
    k("s_mov_b32 s15, s7")
    k("s_mov_b64 s[18:19], s[14:15]")
    sCb, sPart, sGU, sDN, sWo = (S() for _ in range(5))
    vDg, vDd = V(4), V(4)
    a, b = V(), V()
    k(f"s_lshr_b32 {s(sCb)}, {s(sSl)}, 2")
    k(f"s_and_b32 {s(sPart)}, {s(sSl)}, 3")
    k(f"s_mul_i32 {s(sGU)}, {s(sPart)}, {256 * 7168}")
    k(f"s_lshl_b32 {s(sT)}, {s(sCb)}, 7")
    k(f"s_add_u32 {s(sGU)}, {s(sGU)}, {s(sT)}")
    if P["ush"]:
        sUU = S()
        k(f"s_cmpk_ge_u32 s2, {32 * (7 - P['ush'])}")
        k(f"s_cselect_b32 {s(sUU)}, {P['ush'] - 7}, {P['ush']}")
        k(f"s_lshl_b32 {s(sUU)}, {s(sUU)}, 7")
        k(f"s_add_u32 {s(sUU)}, {s(sUU)}, {s(sGU)}")
    k(f"v_bfe_u32 {v(a)}, {v(vL)}, 1, 2")
    k(f"v_bfe_u32 {v(b)}, {v(vL)}, 4, 1")
    k(f"v_xor_b32 {v(a)}, {v(a)}, {v(b)}")
    k(f"v_and_b32 {v(b)}, 1, {v(vL)}")
    k(f"v_lshlrev_b32 {v(b)}, 4, {v(b)}")
    k(f"v_lshl_add_u32 {v(a)}, {v(a)}, 5, {v(b)}")
    k(f"v_lshrrev_b32 {v(b)}, 3, {v(vL)}")
    k(f"v_mul_u32_u24 {v(vDg)}, 7168, {v(b)}")
    k(f"v_add_u32 {v(vDg)}, {v(a)}, {v(vDg)}")

    def steps(reg, step):
        k(f"v_xor_b32 {v(reg + 1)}, 64, {v(reg)}")
        k(f"v_add_u32 {v(reg + 2)}, {2 * step}, {v(reg)}")
        k(f"v_add_u32 {v(reg + 3)}, {3 * step}, {v(reg + 1)}")
        k(f"v_add_u32 {v(reg + 1)}, {step}, {v(reg + 1)}")

    def down_setup():
        k("s_mov_b64 s[22:23], s[14:15]")
        k(f"s_lshl_b32 {s(sDN)}, {s(sCb)}, 17")
        k(f"s_lshl_b32 {s(sT)}, {s(sPart)}, 9")
        k(f"s_add_u32 {s(sDN)}, {s(sDN)}, {s(sT)}")
        k(f"v_lshl_add_u32 {v(vDd)}, {v(b)}, 11, {v(a)}")
        steps(vDd, 8 * 2048 - 1024)
        k(f"v_mov_b32 {v(a)}, -1")
        k(f"v_mov_b32 {v(b)}, 0")
        lg.issue(f"ds_write_b32 {v(b)}, {v(a)} offset:{M_DFL}")
        if P["dad"]:
            lg.issue(f"ds_write_b32 {v(b)}, {v(a)} offset:{M_GOT}")

    steps(vDg, 8 * 7168 - 1024)
    nt = " nt" if P["wnt"] else ""
    wq = [(m, g, i) for g in range(8) for m in "gu" for i in range(4)] + [("d", g, i) for g in range(8) for i in range(4)]
    if othl:
        wq = [("x", g, i) for g in range(8) for i in range(2)] + wq
        sXo, sXs, sXm, vXl = S(), S(), S(), V()
        k(f"s_cmp_eq_u32 {s(sHF)}, 0")
        k(f"s_cselect_b32 {s(sXo)}, {s(sRP)}, {s(sQ)}")
        k(f"s_cselect_b32 {s(sXs)}, -1, 1")
        k(f"s_cselect_b32 {s(sXm)}, 16384, 0")
        k(f"s_lshl_b32 {s(sXs)}, {s(sXs)}, 19")
        k(f"s_lshl_b32 {s(sXo)}, {s(sXo)}, 11")
        k(f"v_and_b32 {v(vXl)}, 32, {v(vL)}")
        k(f"v_lshlrev_b32 {v(vDd)}, 4, {v(vL)}")
        k(f"v_xor_b32 {v(vXl)}, {v(vXl)}, {v(vDd)}")

    def pieces(n, depth=None):
        for _ in range(min(n, len(wq))):
            m, g, i = wq.pop(0)
            if m == "x":
                if i == 0:
                    k(f"s_add_u32 m0, {s(sXm)}, {g * 2048}")
                    if g:
                        k(f"s_add_u32 {s(sXo)}, {s(sXo)}, {s(sXs)}")
                vm.issue(f"buffer_load_dwordx4 {v(vXl)}, {X}, {s(sXo)} offen offset:{i * 1024} lds", m)
                continue
            if i == 0:
                k(f"s_mov_b32 m0, {WBASE + 'gud'.index(m) * 32768 + g * 4096}")
                if m == "g":
                    k(f"s_add_u32 {s(sWo)}, {s(sGU)}, {g * 32 * 7168}")
                elif m == "u" and P["ush"]:
                    k(f"s_add_u32 {s(sWo)}, {s(sUU)}, {g * 32 * 7168}")
                elif m == "d":
                    k(f"s_add_u32 {s(sWo)}, {s(sDN)}, {(g >> 2) * 65536 + (g & 3) * 128}")
            if depth and vm.n - vm.done >= depth:
                k(f"s_waitcnt vmcnt({depth - 1})")
                vm.done = vm.n - depth + 1
            vm.issue(f"buffer_load_dwordx4 {v((vDd if m == 'd' else vDg) + i)}, {dict(g=WG, u=WU, d=WD)[m]}, {s(sWo)} offen offset:{i * 1024}{nt} lds", m)

    k("s_waitcnt lgkmcnt(0)")
    lg.done = lg.n
    stamp(lg, "lwr")
    if P["lbl"]:
        k("s_barrier")
    pieces(P.get("npre", 0))
    if "L" in P["first"]:
        k("s_branch LOAD1")
        k.lines = main_lines
        k(f";@R {P['tL']} 1 8 !")
        k("LOAD1:")
    pieces(P.get("npre1", 0))
    if bar0:
        k("s_barrier")
    stamp(lg, "l0")
    d0 = P.get("depth0", 60)
    if spin:
        if othl:
            pieces(16 + P["xm"] - P.get("npre", 0) - P.get("npre1", 0), d0)
            k(f"v_mov_b32 {v(vXl)}, 256")
        else:
            pieces(P["xm"], d0)
        down_setup()
        if othl:
            vm.wait("x")
            k("s_mov_b64 exec, 1")
            lg.issue(f"ds_add_u32 {v(b)}, {v(vXl)} offset:{M_CNT + 4}")
            k("s_mov_b64 exec, -1")
        stamp(lg, "l1")
    elif bar0b:
        pieces(P["n00"], d0)
        k("s_barrier")
        stamp(lg, "l0b")
    for n, nm in ((P["n0"], "l1"), (P["n0a"], "l1a"), (P["n1"], "l1b"), (P["n2"], "l2")):
        if nm == "l1a" and not bar1a or spin:
            continue
        pieces(n, d0)
        if nm == "l1":
            down_setup()
            lg.all()
        if othl and nm == "l" + P["othbar"][3:]:
            assert wq[0][0] != "x"
            vm.wait("x")
        k("s_barrier")
        stamp(lg, nm)
    pieces(len(wq) - 32 + P["dpre"] - P["pw_n"], P["depth"])
    if P.get("pollwait"):
        lg.all()
        stamp(lg, "lpw")
        k("s_barrier")
    pieces(P["pw_n"], P["depth"])
    stamp(lg, "lgi")
    dd = P["ddepth"] or (P["depth"] if P["dthr"] else 60)
    if P["fin"]:
        k("s_barrier")
        if P["dad"]:
            assert order == "D" and P["barg"] and P["dmid"] == 32
            k(f"ds_read_b32 {v(a)}, {v(b)} offset:{M_GOT}")
            k("s_waitcnt lgkmcnt(0)")
            k(f"v_cmp_eq_u32 vcc, 0, {v(a)}")
            k("s_cbranch_vccnz AHEAD")
            wq2 = list(wq)
        pieces(P["dmid"], 60)
    vm.wait("u")
    stamp(lg, "lgu")
    k("s_barrier")
    pieces(len(wq) - P["dlate"] - P["dgu"], dd)
    if P["barg"]:
        k("s_barrier")
    pieces(P["dgu"], dd)
    stamp(lg, "ldi")
    if order in "AC":
        k("s_barrier")
    pieces(32, dd)
    if P["dad"]:
        k("LEND:")
        vm.dirty = True
    if P["hx_at"] == -4 and P["hxn"]:
        k(f"s_waitcnt vmcnt({P['hxn']})")
        k("s_barrier")
    vm.all()
    k(f"ds_write_b32 {v(b)}, {v(b)} offset:{M_DFL}")
    if P["hx_at"] == -4 and not P["hxn"]:
        k("s_barrier")
    stamp(lg, "ldn")
    if prof:
        stamp_flush(lg, sW, stamps)
    prof_names["load"] = list(stamps)
    k("s_endpgm")
    if P["dad"]:
        k("AHEAD:")
        wq[:] = wq2
        pieces(P["dan"])
        k(f"s_waitcnt vmcnt({P['dan']})")
        k("s_barrier")
        if P["dad"] == 2:
            k("s_barrier")
        pieces(32)
        if P["dad"] == 1:
            k("s_barrier")
        k("s_branch LEND")
    if P["pf"]:
        assert idle and spin and P["pollwait"]
        k(";@C")
        k("PREF:")
        k("s_lshl_b32 s22, 7, 20")
        k("s_lshl_b32 s23, 1, 17")
        k("s_and_b32 s3, s2, 7")
        k("s_mul_i32 s3, s3, 28")
        k(f"s_sub_u32 {s(sT)}, {s(sU)}, 28")
        k(f"s_mul_i32 {s(sT)}, {s(sT)}, 7")
        k(f"s_add_u32 s3, s3, {s(sT)}")
        k(f"v_lshrrev_b32 v2, 1, {v(vL)}")
        k(f"v_and_b32 v3, 1, {v(vL)}")
        k("v_lshlrev_b32 v3, 7, v3")
        k("v_lshl_add_u32 v2, v2, 11, v3")
        k("s_waitcnt lgkmcnt(0)")
        k("s_barrier")
        if P["pfs"] == "pw":
            k("s_barrier")
        elif P["pfs"]:
            k("v_mov_b32 v5, 0")
            k("PFS:")
            k(f"ds_read_b32 v6, v5 offset:{M_CNT + 4 * P['pfs']}")
            k("s_waitcnt lgkmcnt(0)")
            k("v_cmp_eq_u32 vcc, 8, v6")
            k("s_cbranch_vccz PFS")
        n = 0
        for gp in str(P["pf"]):
            if "h" in str(P["pf"]):
                k(f"s_mov_b32 exec_lo, {'0xaaaaaaaa' if gp == 'h' else -1}")
                k("s_mov_b32 exec_hi, exec_lo")
                gp = "2" if gp == "h" else gp
            for j in range(7):
                k(f"s_add_u32 {s(sT)}, s3, {j}")
                k(f"s_and_b32 {s(sT2)}, {s(sT)}, 3")
                k(f"s_lshr_b32 {s(sT)}, {s(sT)}, 2")
                k(f"s_lshl_b32 {s(sT2)}, {s(sT2)}, 9")
                k(f"s_lshl_b32 {s(sT)}, {s(sT)}, 17")
                k(f"s_add_u32 {s(sT2)}, {s(sT2)}, {(int(gp) >> 1) * 65536}")
                k(f"s_add_u32 {s(sT)}, {s(sT)}, {s(sT2)}")
                if n >= P["pfd"]:
                    k(f"s_waitcnt vmcnt({P['pfd'] - 1})")
                k(f"buffer_load_dword v4, v2, {WD}, {s(sT)} offen offset:{(int(gp) & 1) * 256}")
                n += 1
                if n == P["pfb"]:
                    k("s_barrier")
        for _ in range(P["pfe"]):
            k("s_barrier")
        k("s_waitcnt vmcnt(0)")
        k("s_endpgm")

    if idle and P["bari"] and not P["lbl"]:
        aux0 += ["LOADB:", "    s_barrier", "    s_branch LOAD"]
    if idle and P["first"]:
        aux0 += ["    ;@U A", "    s_branch PREF" if P["pf"] else "    s_endpgm"]
    i = k.lines.index("    ;@AUX0")
    k.lines[i:i + 1] = aux0
    k.vgprs = max(vtop, V.top)
    k.lines, nnop = hazard.pad(k.lines)

    def mk(lines):
        k.lines = lines
        return build([k], single=True, notes="generated by gen/fused3.py" + (" (two-step publish)" if two else "")).replace(".p2align 8\n.type", ".p2align 12\n.type")

    lines, labels = pads.place(k.lines, mk, NAME, P["blk"], verbose=not prof)
    if not prof:
        print(" ".join(f"{n}@{a:x}" for n, a in labels.items() if n in ("COMM0", "LOAD", "CMP2", "COMM", "LOAD1", "GOT", "END", "POLLA")))
    text = mk(lines)
    open(path, "w").write(text)
    if prof:
        import json
        json.dump(prof_names, open(path + ".json", "w"))
    return dict(vgprs=k.vgprs, nops=nnop, lines=len(k.lines), prof=prof_names)


if __name__ == "__main__":
    print(gen("h0.s"))
    print(gen("h0p.s", prof=True))
```

```python
import sys, ast
sys.path.insert(0, "gen")
import fused3
def val(x):
    try: return ast.literal_eval(x)
    except Exception: return x
for spec in " ".join(sys.argv[1:]).split("/"):
    w = spec.split()
    kw = {a.split("=")[0]: val(a.split("=")[1]) for a in w[1:]}
    st = kw.pop("stamps", None)
    r = fused3.gen(f"exp/{w[0]}.s", **kw)
    fused3.gen(f"exp/{w[0]}p.s", prof=True, stamps=st.split(",") if st else None, **kw)
    print(w[0], kw, r["vgprs"], r["lines"])
```
